```python
import torch

def _softmax(x, axis=-1):
    return torch.softmax(x, dim=axis)
def _gelu(x):
    return torch.nn.functional.gelu(x, approximate="tanh")
def _silu(x):
    return torch.nn.functional.silu(x)
def _sigmoid(x):
    return torch.sigmoid(x)
def _layernorm(x, axis=-1, eps=1e-5):
    m = x.mean(dim=axis, keepdim=True)
    v = x.var(dim=axis, keepdim=True, unbiased=False)
    return (x - m) / torch.sqrt(v + eps)
def _scatter_add(tgt, idx, src, axis=0):
    return tgt.clone().index_add_(axis, idx, src)
def _segment_sum(src, seg, n):
    out = torch.zeros((n,) + src.shape[1:], dtype=src.dtype)
    return out.index_add_(0, seg, src)
def _pad(x, pw):
    flat = tuple(v for pair in reversed(pw) for v in pair)
    return torch.nn.functional.pad(x, flat)

kernel_name = 'standalone__mha_block_cached__near_ridge'

def setup_inputs():

    _w = (lambda a: (lambda t: t.to(torch.bfloat16) if t.is_floating_point() else t)(torch.as_tensor(a)))
    B, Sq, D = 16, 144, 512
    H, Sk, Dh = 32, 512, 128
    return {
        "x": _w((lambda *s: torch.randn(*s, dtype=torch.bfloat16) * 0.8)(B, Sq, D)),
        "k_cache": _w((lambda *s: torch.randn(*s, dtype=torch.bfloat16) * 0.8)(B, H, Sk, Dh)),
        "v_cache": _w((lambda *s: torch.randn(*s, dtype=torch.bfloat16) * 0.05)(B, H, Sk, Dh)),
        "wq": _w((lambda *s: torch.randn(*s, dtype=torch.bfloat16) * 0.8)(D, H * Dh) * (D ** -0.5)),
        "wo": _w((lambda *s: torch.randn(*s, dtype=torch.bfloat16) * 0.05)(H * Dh, D) * ((H * Dh) ** -0.5)),
    }

def reference(x, k_cache, v_cache, wq, wo):
    B, Sq, D = x.shape
    H, Dh = 32, 128
    q = (lambda x, *d: x.permute(*d))((x @ wq).reshape(B, Sq, H, Dh), 0, 2, 1, 3)
    scores = torch.einsum("bhqd,bhkd->bhqk", q, k_cache) * (Dh ** -0.5)
    p = _softmax(scores, axis=-1)
    o = torch.einsum("bhqk,bhkd->bhqd", p, v_cache)
    return (lambda x, *d: x.permute(*d))(o, 0, 2, 1, 3).reshape(B, Sq, H * Dh) @ wo
```

```python
import re

def R(f, a, n=1):
    return [(f, a + i) for i in range(n)]
def rs(f, a, n=1):
    return f"{f}{a}" if n == 1 else f"{f}[{a}:{a+n-1}]"

ASYNC_LGKM = ('DS', 'DW')
ASYNC_VM = ('L', 'G', 'ST')
VALU = ('E', 'V', 'P')

class Op:
    n = 0
    def __init__(self, kind, text, rd=(), wr=(), **kw):
        self.kind, self.text, self.rd, self.wr = kind, text, list(rd), list(wr)
        self.preds = []
        self.succs = []
        self.needs = []
        self.est = kw.get('est', -1)
        self.pin = kw.get('pin')
        self.lst = None
        self.gap = None
        self.idx = None
        self.tag = kw.get('tag')
        self.lds_rd = kw.get('lds_rd', [])
        self.lds_wr = kw.get('lds_wr', [])
        self.private = kw.get('private', False)
        self.nofence = kw.get('nofence', False)
        self.soft = kw.get('soft')
        Op.n += 1
        self.seq = Op.n

class Prog:
    LAT_DS = 6
    LAT_G = 40
    def __init__(self):
        self.ops = []
        self.mf = []
        self.lastw = {}
        self.readers = {}
        self.fence_op = None
    def nm(self):
        return len(self.mf)
    def dep(self, a, b, dist):
        if a is b: return
        b.preds.append((a, dist)); a.succs.append((b, dist))
    def _dist(self, a, b, raw):
        if a.kind == 'M' and b.kind == 'M': return 1
        if raw:
            if a.kind == 'DS': return self.LAT_DS
            if a.kind == 'G': return self.LAT_G
            if a.kind == 'M': return 4
            if b.kind == 'M': return 2
            if a.kind == 'E': return 1
            if b.kind == 'P': return 1
            if a.kind == 'S' and b.kind == 'L': return 1
            return 0
        if a.kind == 'M':
            return 0 if b.kind in ('DS', 'G') else 2
        if b.kind == 'M': return 1
        if a.kind == 'ST': return 1
        return 0
    def add(self, op):
        for r in op.rd:
            w = self.lastw.get(r)
            if w is not None:
                self.dep(w, op, self._dist(w, op, True))
                if w.kind in ('DS', 'G') and w not in op.needs: op.needs.append(w)
        for r in op.wr:
            w = self.lastw.get(r)
            if w is not None:
                d = self._dist(w, op, False)
                if w.kind == 'M' and op.kind != 'M': d = 4
                self.dep(w, op, d)
                if w.kind in ('DS', 'G') and w.kind != op.kind and w not in op.needs: op.needs.append(w)
            for q in self.readers.get(r, ()):
                self.dep(q, op, self._dist(q, op, False))
        for r in op.rd:
            self.readers.setdefault(r, []).append(op)
        for r in op.wr:
            self.lastw[r] = op
            self.readers[r] = []
        if op.kind == 'M':
            op.idx = len(self.mf); self.mf.append(op)
        if self.fence_op is not None and not op.nofence and op.kind != 'M':
            self.dep(self.fence_op, op, 0)
        self.ops.append(op)
        return op
    def fence(self, text, kind='X'):
        f = Op(kind, text, pin=self.nm() - 1)
        for o in self.ops:
            if not o.nofence and o.kind != 'M': self.dep(o, f, 0)
        self.ops.append(f)
        self.fence_op = f
        return f

    def schedule(self):
        N = len(self.mf)
        BIG = N + 10
        indeg = {o: len(o.preds) for o in self.ops}
        topo = [o for o in self.ops if indeg[o] == 0]
        i = 0
        while i < len(topo):
            for s, _ in topo[i].succs:
                indeg[s] -= 1
                if indeg[s] == 0: topo.append(s)
            i += 1
        assert len(topo) == len(self.ops), "dependency cycle"
        hard = {}
        for o in reversed(topo):
            if o.kind == 'M':
                o.lst = o.idx; hard[o] = o.idx - 1; continue
            l = BIG; h = N - 1
            for s, d in o.succs:
                l = min(l, s.lst - d); h = min(h, hard[s])
            if o.pin is not None:
                assert o.pin <= h, ("pinned op too late", o.text, o.pin, h)
                l = o.pin; h = o.pin
            if o.soft is not None: l = min(l, o.soft)
            o.lst = l; hard[o] = h
        seen = set(); waitgap = set()
        for m in self.mf:
            nw = [w for w in m.needs if w not in seen]
            if nw: waitgap.add(m.idx - 1); seen.update(nw)
        fill = [o for o in self.ops if o.kind != 'M']
        byhard = {}
        for o in fill: byhard.setdefault(hard[o], []).append(o)
        npl = {o: sum(1 for p, _ in o.preds if p.kind != 'M') for o in fill}
        ready = set(o for o in fill if npl[o] == 0)
        def est(o):
            e = o.est
            for p, d in o.preds:
                e = max(e, (p.idx if p.kind == 'M' else p.gap) + d)
            if o.pin is not None: e = max(e, o.pin)
            return e
        def hest(o):
            return max([p.idx for p, _ in o.preds if p.kind == 'M'] + [-1])
        estc = {o: est(o) for o in ready}
        gaps = {g: [] for g in range(-1, N)}
        def place(o, g):
            assert hest(o) <= g, ("forced before its MFMA producer", o.text, g, hest(o))
            o.gap = g; gaps[g].append(o); ready.discard(o)
            for s, _ in o.succs:
                if s.kind != 'M':
                    npl[s] -= 1
                    if npl[s] == 0:
                        ready.add(s); estc[s] = est(s)
        def force(o, g):
            if o.gap is not None: return
            for p, _ in sorted(o.preds, key=lambda x: x[0].seq):
                if p.kind != 'M' and p.gap is None: force(p, g)
            place(o, g)
        cost = lambda o: 2 if o.kind == 'E' else (0 if o.kind == 'X' else 1)
        for g in range(-1, N):
            if g == -1:
                while True:
                    c = sorted([o for o in ready if estc[o] <= -1 or (o.est <= -1 and hest(o) <= -1 and o.kind in ('L', 'S', 'G') and o.pin is None)], key=lambda o: (o.lst, o.seq))
                    c = [o for o in c if o.kind in ('L', 'S', 'G')]
                    if not c: break
                    place(c[0], g)
            for o in sorted(byhard.get(g, []), key=lambda o: o.seq): force(o, g)
            if g == -1: continue
            scal = lambda o: o.kind in ('S', 'B')
            cap = 2 - sum(cost(o) for o in gaps[g] if not scal(o))
            ns = sum((2 if o.kind == 'B' else 1) for o in gaps[g] if scal(o)) + (1 if g in waitgap else 0)
            if ns > 1: cap -= ns - 1
            while True:
                c = sorted([o for o in ready if estc[o] <= g and o.pin is None], key=lambda o: (o.lst, o.seq))
                hasv = any(o.kind in VALU for o in gaps[g])
                pick = None
                for o in c:
                    if scal(o):
                        if ns < 1: pick = o; break
                        if cap >= 1 and o.lst <= g + 1: pick = o; break
                        continue
                    if cost(o) <= cap:
                        if o.kind not in VALU and hasv and any(p.gap == g and p.kind in VALU for p, _ in o.preds): continue
                        pick = o; break
                if pick is None: break
                if scal(pick):
                    if ns >= 1: cap -= 1
                    ns += 1
                else: cap -= cost(pick)
                place(pick, g)
        assert all(o.gap is not None for o in fill)
        out = []
        cls = lambda o: 0 if o.kind in ('S', 'B', 'X') else (2 if o.kind in VALU else 1)
        for g in range(-1, N):
            if g >= 0: out.append(self.mf[g])
            l = gaps[g]
            pos = {o: i for i, o in enumerate(l)}
            done = set(); rem = list(l)
            big = len(l) > 4
            while rem:
                c = [o for o in rem if all((p not in pos) or (p in done) for p, _ in o.preds)]
                o = min(c, key=(lambda o: pos[o]) if big else (lambda o: (cls(o), pos[o])))
                out.append(o); done.add(o); rem.remove(o)
        self.gaps = gaps
        return out

def insert_waits(lin):
    pos = {o: i for i, o in enumerate(lin)}
    want = {}
    lastm = None
    for i, o in enumerate(lin):
        if o.needs:
            at = i
            if o.kind == 'M' and lastm is not None and all(pos[w] < lastm for w in o.needs):
                at = lastm + 1
            want.setdefault(at, []).extend(o.needs)
        if o.kind == 'M': lastm = i
    out = []; lq = []; vq = []
    for i, o in enumerate(lin):
        if i in want:
            ln = vn = None
            for w in want[i]:
                assert pos[w] < i, ("need before issue", w.text, o.text)
                if w in lq:
                    k = len(lq) - 1 - lq.index(w); ln = k if ln is None else min(ln, k)
                if w in vq:
                    k = len(vq) - 1 - vq.index(w); vn = k if vn is None else min(vn, k)
            t = []
            if vn is not None:
                vn = min(vn, 63); t.append(f"vmcnt({vn})"); done_v = vq[:len(vq) - vn]; vq = vq[len(vq) - vn:]
            else: done_v = []
            if ln is not None:
                ln = min(ln, 15); t.append(f"lgkmcnt({ln})"); done_l = lq[:len(lq) - ln]; lq = lq[len(lq) - ln:]
            else: done_l = []
            if t:
                w = Op('W', "s_waitcnt " + " ".join(t)); w.done = done_v + done_l
                out.append(w)
        out.append(o)
        if o.kind in ASYNC_LGKM: lq.append(o)
        if o.kind in ASYNC_VM: vq.append(o)
    return out

def fix_hazards(lin):
    out = []
    def states(o):
        if o.kind == 'X': return 0
        m = re.match(r"s_nop (\d+)", o.text)
        return int(m.group(1)) + 1 if m else 1
    nops = 0
    for o in lin:
        need = 0; dist = 0
        rd, wr = set(o.rd), set(o.wr)
        for p in reversed(out):
            if dist >= 9: break
            pw, pr = set(p.wr), set(p.rd)
            req = 0
            if p.kind == 'M':
                if o.kind == 'M':
                    if pw & set(o.ab): req = 8
                    elif pw & set(o.c) and set(o.c) != pw: req = 6
                elif pw & (rd | wr): req = 8
                elif o.kind in VALU and set(p.c) & wr: req = 3
            elif p.kind in VALU:
                if o.kind == 'M' and pw & rd: req = 2
                if o.kind == 'P' and pw & rd: req = 2
                if p.kind == 'E' and o.kind != 'E' and pw & rd: req = max(req, 1)
                sw = {r for r in pw if r[0] in ('s', 'vcc')}
                if sw & rd:
                    req = max(req, 5 if o.kind in ASYNC_VM else 2)
                if 'readfirstlane' in o.text and pw & rd: req = max(req, 1)
            elif p.kind == 'ST' and pr & wr: req = 2
            elif p.kind == 'S' and ('m0', 0) in pw and o.kind == 'L': req = 1
            need = max(need, req - dist)
            dist += states(p)
        if need > 0:
            out.append(Op('N', f"s_nop {need-1}")); nops += need
        out.append(o)
    return out, nops

def verify_lds(lin):
    done_at = {}; bars = []
    for i, o in enumerate(lin):
        if o.kind == 'W':
            for w in o.done: done_at[w] = i
        if o.kind == 'B': bars.append(i)
    def ok(a, i, private):
        d = done_at.get(a)
        if d is None or d > i: return False
        return private or any(d < b < i for b in bars)
    lastw = {}; rds = {}
    for i, o in enumerate(lin):
        for p, want in o.lds_rd:
            w = lastw.get(p)
            assert w is not None, ("read of unwritten LDS", p, o.text)
            assert w[1] == want, ("wrong content", p, want, w[1], o.text)
            assert ok(w[0], i, o.private), ("RAW not covered", p, want, o.text)
            rds.setdefault(p, []).append(o)
        for p, what in o.lds_wr:
            for r in rds.get(p, []):
                assert ok(r, i, r.private), ("WAR not covered", p, what, r.text, o.text)
            rds[p] = []
            lastw[p] = (o, what)

def stats(lin):
    tot = 0; cur = None; over = 0
    def close(c):
        return c
    t = 0; prev = None; gapstart = None; res = []
    for o in lin:
        if o.kind == 'X': continue
        if o.kind == 'M':
            if gapstart is not None:
                t = max(t, gapstart + 16)
                res.append(t - gapstart)
            gapstart = t; t += 4
        elif o.kind in ('S', 'W', 'B', 'N'):
            m = re.match(r"s_nop (\d+)", o.text)
            t += 4 + (int(m.group(1)) if m else 0) + (12 if o.kind == 'B' else 0)
        else:
            if gapstart is not None: t = max(t, gapstart + 8)
            if o.kind not in VALU and prev is not None and prev.kind in VALU: t += 8
            t += 8 if o.kind == 'E' else 4
        prev = o
    return t, res
```

```python
import sys, math, struct
from sched import *

NAME = "standalone__mha_block_cached__near_ridge"
ACC1, OACC, LACC, NEGM, QF = 4, 76, 148, 160, 172
aK, aK8, aV, aVk, aX8 = 204, 208, 212, 220, 228
aL16, aP8w, vK, vV, vWQ, vWO, RCP, vL16 = 232, 233, 234, 235, 236, 237, 238, 241
TMP = 244
vX, aXo = OACC, OACC + 4
XF, FB, NFB, X8B, P8F, QF8, ONES = 0, 128, 12, 176, 184, 192, 208
SX, SK, SV, SWQ, SWO, SWS, SOUT = 8, 12, 16, 20, 24, 28, 32
sW, sB, sH0, sLw, sKV, sWQb, sXb, sX8, sC = 36, 37, 38, 39, 40, 41, 42, 43, 44
sOs, sO8, sD, sT, sWOb, sOl, sOl8, sPs, sP8, sHG, sJ = 45, 49, 50, 51, 52, 53, 54, 55, 59, 60, 61
KR, VR, X8R, MISC = 0, 65536, 131072, 147456
P8R, Q8R = MISC, MISC + 4096
WS_PART = 0x1400000
CSCALE = struct.unpack("<I", struct.pack("<f", math.log2(math.e) / math.sqrt(128.0)))[0]

class Gen:
    def __init__(self, opt):
        self.p = Prog(); self.opt = opt
        self.p.LAT_DS = opt.get('lat', 6)
        self.fb = 0; self.x8b = 0
        self.items = []
        self.bars = []
        self.slotseq = {'K': 0, 'V': 0}
        self.marks = []
    def M(self, d, a, b, c):
        o = Op('M', f"v_mfma_f32_16x16x32_bf16 {rs('v', d, 4)}, {rs(a[0], a[1], 4)}, {rs(b[0], b[1], 4)}, " + ("0" if c is None else rs('v', c, 4)),
               rd=R(*a, 4) + R(*b, 4) + ([] if c is None else R('v', c, 4)), wr=R('v', d, 4))
        o.ab = R(*a, 4) + R(*b, 4); o.c = [] if c is None else R('v', c, 4)
        return self.p.add(o)
    def D(self, dst, areg, off, lds, bar=None, **kw):
        o = Op('DS', f"ds_read_b128 {rs(dst[0], dst[1], 4)}, v{areg} offset:{off}", rd=R('v', areg), wr=R(*dst, 4), lds_rd=lds, **kw)
        self.p.add(o)
        if bar: self.p.dep(bar, o, 0)
        return o
    def T(self, dst, areg, off, lds, bar):
        o = Op('DS', f"ds_read_b64_tr_b16 {rs('a', dst, 2)}, v{areg} offset:{off}", rd=R('v', areg), wr=R('a', dst, 2), lds_rd=lds)
        self.p.add(o); self.p.dep(bar, o, 0)
        return o
    def V(self, text, rd, wr, kind='V', **kw):
        return self.p.add(Op(kind, text, rd=rd, wr=wr, **kw))
    def S(self, text, rd, wr, **kw):
        return self.p.add(Op('S', text, rd=rd, wr=wr, **kw))
    def bar(self, lead=None):
        if lead is None: lead = self.p.LAT_DS + 2
        pin = max(self.p.nm() - lead, -1)
        if self.bars: pin = max(pin, self.bars[-1].pin)
        o = Op('B', "s_barrier", pin=pin)
        self.p.add(o)
        if self.bars: self.p.dep(self.bars[-1], o, 0)
        self.bars.append(o)
        return o
    def nextfb(self):
        r = FB + 4 * self.fb; self.fb = (self.fb + 1) % NFB; return r
    def slot(self, part):
        order = self.opt.get('cyc', [3, 1, 2, 0])
        s = order[self.slotseq[part] % 4]; self.slotseq[part] += 1; return s
    def item(self, region, base, content, bar, src, key=None):
        self.items.append(dict(region=region, base=base, content=content, bar=bar, src=src, key=key))
    def ring(self, part, slot):
        return (part, slot), (KR if part == 'K' else VR) + slot * 16384

    def proj(self, name, first=True):
        p = self.p; isq = name[0] == 'Q'; ph = int(name[1])
        nt = self.opt.get('wflags', 'nt')
        self.marks.append((name, p.nm()))
        xslots = [0, 2, 0, 1]; wslots = [1, 3, 2, 0]
        start = p.nm()
        for n in range(4):
            b = self.bar()
            if name == 'Q0':
                est = -1 if n == 0 else start + (n - 1) * 72 + 30
                for a, part in enumerate('KV'):
                    reg, base = self.ring(part, xslots[n]); c = ('X', n, a)
                    self.item(reg, base, c, None, lambda j, n=n, a=a: (SX, vX + j, sXb, a * 16384 + n * 256 + j * 1024, self.opt.get('xflags', 'nt')), key=(est, 0, a))
                    for hs in range(2):
                        for u in range(2):
                            self.D(('a', XF + (a * 16 + n * 4 + hs * 2 + u) * 4), aXo + a * 4 + hs * 2 + u, xslots[n] * 16384,
                                   [((reg, j), c) for j in range(4)], private=True, est=est, soft=est + 8)
                if n == 0:
                    self.item('X8', X8R, 'X8', b, lambda j: (SX, vX + j, sX8, j * 1024, self.opt.get('xflags', 'nt')), key=(-1, 0, 2))
            if not isq:
                if n == 0:
                    self.o8reg = 'O8%d' % ph; self.o8base = X8R + ph * 16384
                    self.item(self.o8reg, self.o8base, self.o8reg, b, lambda j, ph=ph: (SWS, vL16, sOl8, ph * 36864 + j * 1024, self.opt.get('oflags', '')), key=(b.pin, -1, 0))
                for q in range(2):
                    self.S(f"s_add_u32 s{sT}, s{sOl}, {(2 * n + ph) * 36864 + q * 4096}", R('s', sOl), R('s', sT))
                    for s in range(4):
                        d = XF + (q * 16 + n * 4 + s) * 4
                        p.add(Op('G', f"buffer_load_dwordx4 {rs('a', d, 4)}, v{vL16}, {rs('s', SWS, 4)}, s{sT} offen offset:{s*1024} {self.opt.get('oflags', '')}",
                                 rd=R('v', vL16) + R('s', sT), wr=R('a', d, 4)))
            for hs, part in enumerate('KV'):
                sl = wslots[n] if name == 'Q0' else self.slot(part)
                reg, base = self.ring(part, sl); c = (name, n, hs)
                if isq:
                    self.item(reg, base, c, b, lambda j, n=n, hs=hs, ph=ph: (SWQ, vWQ, sWQb, ((2 * n + hs) * 64 + 4 * j) * 8192 + ph * 256, nt))
                else:
                    self.item(reg, base, c, b, lambda j, n=n, hs=hs, ph=ph: (SWO, vWO, sWOb, ((2 * n + ph) * 128 + 64 * hs + 16 * j) * 1024, nt))
                areg = aVk if part == 'K' else aV
                for u in range(2):
                    ks = n * 4 + hs * 2 + u
                    x8 = X8B + 4 * self.x8b; self.x8b ^= 1
                    if isq:
                        self.D(('a', x8), aX8 + hs * 2 + u, n * 4096, [(('X8', j), 'X8') for j in range(4)], bar=(b if name == 'Q0' and n == 0 else None))
                    else:
                        self.D(('a', x8), aL16, self.o8base - X8R + ks * 1024, [((self.o8reg, 2 * hs + u), self.o8reg)], bar=(b if n == 0 else None))
                    z = first and ks == 0
                    for t in range(8):
                        f = self.nextfb()
                        for a in range(2):
                            self.T(f + 2 * a, areg + t, sl * 16384 + (2 * u + a) * 1024, [((reg, 2 * u + a), c)], b)
                        for q in range(2):
                            d = ACC1 + (q * 8 + t) * 4
                            self.M(d, ('a', f), ('a', XF + (q * 16 + ks) * 4), None if z else d)
                        if t < 2:
                            d = ACC1 + 64 + t * 4
                            self.M(d, ('a', f), ('a', x8), None if z else d)
    def pack(self, src, dst, scale=None, swap=False):
        if scale is not None:
            for i in range(8):
                self.V(f"v_mul_f32 v{src+i}, {scale[0]}{scale[1]}, v{src+i}", R('v', src + i) + [scale], R('v', src + i))
        for i in range(4):
            self.V(f"v_cvt_pk_bf16_f32 v{dst+i}, v{src+2*i}, v{src+2*i+1}", R('v', src + 2 * i, 2), R('v', dst + i))
        if swap:
            for i in range(2):
                self.V(f"v_permlane16_swap_b32 v{dst+i}, v{dst+2+i}", [('v', dst + i), ('v', dst + 2 + i)], [('v', dst + i), ('v', dst + 2 + i)], kind='P')
    def q_epilogue(self, h):
        self.pack(ACC1 + 64, TMP, ('s', sC), True)
        dw = self.p.add(Op('DW', f"ds_write_b128 v{TMP+4}, {rs('v', TMP, 4)} offset:{Q8R - X8R}", rd=R('v', TMP, 5), lds_wr=[(('Q8', 0), ('Q8', h))]))
        for s in range(4):
            for q in range(2):
                self.pack(ACC1 + (q * 8 + 2 * s) * 4, QF + (q * 4 + s) * 4, ('s', sC), True)
        return dw
    def store(self, reg, sbase, lit, flags):
        self.S(f"s_add_u32 s{sT}, s{sbase}, {lit}", R('s', sbase), R('s', sT))
        return self.p.add(Op('ST', f"buffer_store_dwordx4 {rs('v', reg, 4)}, v{vL16}, {rs('s', SWS, 4)}, s{sT} offen {flags}", rd=R('v', reg, 4) + R('v', vL16) + R('s', sT)))
    def attn(self, h, dw):
        p = self.p
        self.marks.append(("A%d" % h, p.nm()))
        Sr = lambda j, q: ACC1 + (j * 2 + q) * 4
        S8 = ACC1 + 32; P8o = ACC1 + 60
        Pr = lambda u, q: ACC1 + 36 + ((u % 3) * 2 + q) * 4
        kv = self.opt.get('kvflags', 'nt')
        f0 = p.fence(f"L_att{h}:")
        b = self.bar(lead=1); b.needs.append(dw); p.dep(dw, b, 0)
        for s in range(4):
            self.D(('a', QF8 + 4 * s), TMP + 4 + s, Q8R - X8R, [(('Q8', 0), ('Q8', h))], bar=b)
        st = {}
        def kitem(i, b):
            sl = self.slot('K'); reg, base = self.ring('K', sl); c = ('K', h, i)
            self.item(reg, base, c, b, lambda j: (SK, vK, sKV, h * 131072 + i * 16384 + j * 1024, kv))
            st['k'] = (sl, reg, c, b)
        def vitem(i, b):
            sl = self.slot('V'); reg, base = self.ring('V', sl); c = ('V', h, i)
            self.item(reg, base, c, b, lambda j: (SV, vV, sKV, h * 131072 + i * 16384 + j * 1024, kv))
            st['v'] = (sl, reg, c, b)
        def softmax(src, dst):
            for i in range(4):
                self.V(f"v_exp_f32 v{src+i}, v{src+i}", R('v', src + i), R('v', src + i), kind='E')
            for i in range(2):
                self.V(f"v_cvt_pk_bf16_f32 v{dst+i}, v{src+2*i}, v{src+2*i+1}", R('v', src + 2 * i, 2), R('v', dst + i))
        def A8(i):
            sl, reg, c, b = st['k']
            for s in range(4):
                f = self.nextfb()
                self.D(('a', f), aK8 + s, sl * 16384, [((reg, j), c) for j in range(4)], bar=b)
                self.M(S8, ('a', f), ('a', QF8 + 4 * s), NEGM + 8 if s == 0 else S8)
            softmax(S8, P8o)
            st['dw'] = p.add(Op('DW', f"ds_write_b64 v{aP8w}, {rs('v', P8o, 2)} offset:{(i & 1) * 2048}", rd=R('v', P8o, 2) + R('v', aP8w),
                                lds_wr=[(('P8', i & 1), ('P8', h, i))]))
            p.dep(b, st['dw'], 0)
        def A(u):
            sl, reg, c, b = st['k']
            for jj in range(2):
                j = (u & 1) * 2 + jj
                for s in range(4):
                    f = self.nextfb()
                    self.D(('a', f), aK + s, sl * 16384 + j * 1024, [((reg, j), c)], bar=b)
                    for q in range(2):
                        self.M(Sr(j, q), ('a', f), ('v', QF + (q * 4 + s) * 4), NEGM + 4 * q if s == 0 else Sr(j, q))
                for q in range(2):
                    softmax(Sr(j, q), Pr(u, q) + 2 * jj)
        def B(u):
            sl, reg, c, b = st['v']; uu = u & 1; i = u >> 1
            z = u == 0
            p8 = P8F + 4 * uu
            self.D(('a', p8), aL16, P8R - X8R + (i & 1) * 2048 + uu * 1024, [(('P8', i & 1), ('P8', h, i))], bar=b)
            for t in range(8):
                f = self.nextfb()
                for a in range(2):
                    self.T(f + 2 * a, aV + t, sl * 16384 + (2 * uu + a) * 1024, [((reg, 2 * uu + a), c)], b)
                for q in range(2):
                    d = OACC + (q * 8 + t) * 4
                    self.M(d, ('a', f), ('v', Pr(u, q)), None if z else d)
                if t >= 6:
                    d = OACC + 64 + (t - 6) * 4
                    self.M(d, ('a', f), ('a', p8), None if z else d)
                if t in (1, 3):
                    q = t >> 1; d = LACC + 4 * q
                    self.M(d, ('a', ONES), ('v', Pr(u, q)), None if z else d)
                if t == 5:
                    d = LACC + 8
                    self.M(d, ('a', ONES), ('a', p8), None if z else d)
        kitem(0, b)
        A8(0); A(0); A(1)
        for i in range(8):
            b = self.bar(); b.needs.append(st['dw']); p.dep(st['dw'], b, 4)
            vitem(i, b)
            if i < 7: kitem(i + 1, b)
            B(2 * i)
            if i < 7: A8(i + 1); A(2 * i + 2)
            B(2 * i + 1)
            if i < 7: A(2 * i + 3)
        of = self.opt.get('ostflags', '')
        for q in range(3):
            self.V(f"v_rcp_f32 v{RCP+q}, v{LACC+4*q}", R('v', LACC + 4 * q), R('v', RCP + q), kind='E')
        for s in range(4):
            for q in range(2):
                r = OACC + (q * 8 + 2 * s) * 4
                self.pack(r, r, ('v', RCP + q))
                self.store(r, sOs + s, h * 36864 + q * 4096, of)
        self.pack(OACC + 64, OACC + 64, ('v', RCP + 2))
        self.store(OACC + 64, sO8, h * 36864, of)
    def w_epilogue(self):
        pf = self.opt.get('pstflags', '')
        self.pack(ACC1 + 64, ACC1 + 64, None, True)
        self.store(ACC1 + 64, sP8, 0, pf)
        for s in range(4):
            for q in range(2):
                r = ACC1 + (q * 8 + 2 * s) * 4
                self.pack(r, r, None, True)
                self.store(r, sPs + s, q * 4096, pf)
    def make_dma(self):
        p = self.p
        readers = {}
        for o in p.ops:
            for pc, c in o.lds_rd: readers.setdefault((pc, c), []).append(o)
        def firstm(o):
            return min(s.idx for s, _ in o.succs if s.kind == 'M' and o in s.needs)
        pieces = []
        for n, it in enumerate(self.items):
            for j in range(4):
                rd = readers[((it['region'], j), it['content'])]
                key = it['key'] if it['key'] is not None else (it['bar'].pin, 1, min(firstm(o) for o in rd))
                pieces.append((key, n, j, it, rd))
        pieces.sort(key=lambda x: (x[0], x[1], x[2]))
        prevrd = {}; prevL = None
        p.fence_op = None
        self.dmas = []
        for key, n, j, it, rd in pieces:
            srd, vr, sb, lit, fl = it['src'](j)
            s1 = self.S(f"s_add_u32 m0, s{sLw}, {it['base'] + j * 1024}", R('s', sLw), [('m0', 0)], nofence=True)
            s2 = self.S(f"s_add_u32 s{sD}, s{sb}, {lit}", R('s', sb), R('s', sD), nofence=True)
            L = Op('L', f"buffer_load_dwordx4 v{vr}, {rs('s', srd, 4)}, s{sD} offen {fl} lds", rd=[('m0', 0)] + R('s', sD),
                   lds_wr=[((it['region'], j), it['content'])], nofence=True)
            p.add(L); L.rd += R('v', vr)
            if prevL is not None: p.dep(prevL, L, self.opt.get('dspace', 4))
            prevL = L
            old = prevrd.get((it['region'], j))
            if old:
                if old[0].private:
                    for o in old: L.needs.append(o); p.dep(o, L, p.LAT_DS)
                else:
                    last = max(firstm(o) for o in old)
                    fb = next(b for b in self.bars if b.pin >= last)
                    p.dep(fb, L, 0)
            prevrd[(it['region'], j)] = rd
            if it['bar'] is not None:
                it['bar'].needs.append(L); p.dep(L, it['bar'], 200)
            else:
                for o in rd: o.needs.append(L); p.dep(L, o, 0)
                L.soft = key[0] - 200
            self.dmas.append(L)
    def finish(self):
        self.make_dma()
        lin = self.p.schedule()
        lin = insert_waits(lin)
        lin, nops = fix_hazards(lin)
        verify_lds(lin)
        t, res = stats(lin)
        cum = 0; rep = []
        mk = self.marks + [("end", len(res))]
        for (n0, i0), (n1, i1) in zip(mk, mk[1:]):
            rep.append(f"{n0}:{sum(res[i0:i1])}/{16*(i1-i0)}")
        print(f"; instrs {len(lin)} mfma {len(self.p.mf)} nops {nops} est cycles {t}  " + " ".join(rep), file=sys.stderr)
        return lin

def srd(reg, ptr, size):
    return f"    s_mov_b32 s{reg}, s{ptr}\n    s_mov_b32 s{reg+1}, s{ptr+1}\n    s_mov_b32 s{reg+2}, {size}\n    s_mov_b32 s{reg+3}, 0x20000\n"

def prologue(kname):
    s = f""".globl {kname}
.p2align 8
.type {kname},@function
{kname}:
    s_cmp_ge_u32 s2, 256
    s_cbranch_scc1 L_{kname}_exit
    s_load_dwordx16 s[64:79], s[0:1], 0
    v_lshrrev_b32 v1, 6, v0
    v_and_b32 v0, 63, v0
    v_readfirstlane_b32 s{sW}, v1
    s_and_b32 s3, s2, 7
    s_lshr_b32 s4, s2, 3
    s_and_b32 s5, s3, 1
    s_lshl_b32 s5, s5, 3
    s_and_b32 s6, s4, 7
    s_add_u32 s{sB}, s5, s6
    s_lshr_b32 s{sHG}, s3, 1
    s_lshr_b32 s{sJ}, s4, 3
    s_lshl_b32 s5, s{sHG}, 3
    s_lshl_b32 s6, s{sJ}, 1
    s_add_u32 s{sH0}, s5, s6
    s_lshl_b32 s{sLw}, s{sW}, 12
    s_lshl_b32 s5, s{sB}, 5
    s_add_u32 s7, s5, s{sH0}
    s_lshl_b32 s{sKV}, s7, 17
    s_lshl_b32 s{sWQb}, s{sH0}, 8
    s_mul_i32 s{sXb}, s{sB}, 147456
    s_mul_i32 s6, s{sW}, 32512
    s_sub_u32 s6, 131072, s6
    s_add_u32 s{sX8}, s{sXb}, s6
    s_mov_b32 s{sC}, {CSCALE:#x}
    s_mul_i32 s7, s7, 36864
    s_lshl_b32 s6, s{sW}, 13
    s_add_u32 s6, s6, s7
"""
    for i in range(4):
        s += f"    s_xor_b32 s3, s{sW}, {i}\n    s_lshl_b32 s{80+i}, s3, 10\n    s_add_u32 s{sOs+i}, s6, s{80+i}\n"
    s += f"""    s_add_u32 s7, s7, 32768
    s_add_u32 s{sO8}, s7, s83
    s_lshl_b32 s3, s{sHG}, 20
    s_lshl_b32 s4, s{sJ}, 8
    s_add_u32 s{sWOb}, s3, s4
    s_lshl_b32 s3, s{sHG}, 3
    s_add_u32 s3, s3, s5
    s_mul_i32 s3, s3, 36864
    s_lshl_b32 s4, s{sW}, 13
    s_add_u32 s{sOl}, s3, s4
    s_mul_i32 s4, s{sW}, 73728
    s_add_u32 s4, s4, 32768
    s_add_u32 s{sOl8}, s3, s4
    s_lshl_b32 s3, s{sB}, 4
    s_lshl_b32 s4, s{sJ}, 2
    s_add_u32 s3, s3, s4
    s_add_u32 s3, s3, s{sHG}
    s_mul_i32 s3, s3, 36864
    s_add_u32 s3, s3, {WS_PART}
    s_lshl_b32 s4, s{sW}, 13
    s_add_u32 s4, s4, s3
"""
    for i in range(4):
        s += f"    s_add_u32 s{sPs+i}, s4, s{80+i}\n"
    s += f"""    s_add_u32 s3, s3, 32768
    s_add_u32 s{sP8}, s3, s80
    v_and_b32 v1, 15, v0
    v_lshrrev_b32 v2, 4, v0
    v_lshlrev_b32 v{vL16}, 4, v0
    s_lshl_b32 s3, s{sW}, 2
    v_add_u32 v3, s3, v2                      ; 4w+i
    v_xor_b32 v{TMP}, v1, v3
    v_lshlrev_b32 v{TMP}, 4, v{TMP}
    v_lshl_add_u32 v{TMP+1}, v2, 8, s{sLw}      ; w*4096 + i*256
    v_add_u32 v{vK}, v{TMP}, v{TMP+1}
    v_and_b32 v{TMP}, 7, v3
    v_lshlrev_b32 v{TMP}, 1, v{TMP}
    v_xor_b32 v{TMP}, v1, v{TMP}
    v_lshlrev_b32 v{TMP}, 4, v{TMP}
    v_add_u32 v{vV}, v{TMP}, v{TMP+1}
    v_lshl_add_u32 v{vWO}, v3, 10, v{TMP}
    s_lshl_b32 s3, s{sW}, 4
    v_add_u32 v3, s3, v2
    v_lshl_add_u32 v{vWQ}, v3, 13, v{TMP}
    s_lshl_b32 s3, s{sW}, 15
"""
    for j in range(4):
        s += f"""    v_add_u32 v3, {4*j}, v2
    v_xor_b32 v{TMP}, v1, v3
    v_lshlrev_b32 v{TMP}, 4, v{TMP}
    v_lshl_add_u32 v{TMP}, v3, 10, v{TMP}
    v_add_u32 v{TMP}, s3, v{TMP}
    v_subrev_u32 v{vX+j}, {1024*j}, v{TMP}
"""
    s += "    s_waitcnt lgkmcnt(0)\n"
    s += srd(SX, 64, 2359296) + srd(SK, 66, 67108864) + srd(SV, 68, 67108864) + srd(SWQ, 70, 4194304) + srd(SWO, 72, 4194304) + srd(SWS, 78, 0x2000000)
    return s

def prologue2():
    s = f"""    ; x fragment read addresses
    v_lshlrev_b32 v3, 1, v2
"""
    for k in range(4):
        hs, u = k >> 1, k & 1
        s += f"""    v_add_u32 v{TMP}, {8*hs+u}, v3
    v_xor_b32 v{TMP}, v{TMP}, v1
    v_lshlrev_b32 v{TMP}, 4, v{TMP}
    v_lshl_add_u32 v{TMP}, v1, 8, v{TMP}
    v_add_u32 v{aX8+k}, {X8R}, v{TMP}
    v_add_u32 v{aXo+k}, s{sLw}, v{TMP}
    v_add_u32 v{aXo+4+k}, {VR}, v{aXo+k}
"""
    s += f"""    ; K read addresses
    v_and_b32 v{TMP}, 1, v2
    v_lshlrev_b32 v{TMP}, 1, v{TMP}
    v_lshrrev_b32 v{TMP+1}, 1, v2
    v_or_b32 v{TMP}, v{TMP}, v{TMP+1}           ; pi(g)
    v_lshrrev_b32 v{TMP+1}, 2, v1               ; r>>2
    v_and_b32 v{TMP+2}, 3, v1                   ; r&3
    v_lshlrev_b32 v{TMP+3}, 12, v{TMP+1}
    v_lshl_add_u32 v{TMP+3}, v{TMP+2}, 8, v{TMP+3}
"""
    for k in range(4):
        s += f"""    s_lshr_b32 s3, s{80+k}, 8
    v_add_u32 v3, s3, v{TMP}
    v_xor_b32 v3, v3, v1
    v_lshl_add_u32 v{aK+k}, v3, 4, v{TMP+3}
    v_add_u32 v{aK8+k}, s80, v{aK+k}
"""
    s += f"""    ; V / W read addresses: r' = r>>2, c = r&3
    v_and_b32 v{TMP}, 1, v2
    v_lshl_add_u32 v{TMP}, v{TMP}, 2, v{TMP+1}
    v_lshlrev_b32 v{TMP}, 1, v{TMP}             ; f
    v_lshlrev_b32 v{TMP+3}, 12, v2
    v_lshl_add_u32 v{TMP+3}, v{TMP+1}, 8, v{TMP+3}
    v_and_b32 v3, 1, v1
    v_lshl_add_u32 v{TMP+3}, v3, 3, v{TMP+3}
    v_lshrrev_b32 v{TMP+2}, 1, v{TMP+2}         ; c>>1
    s_lshl_b32 s4, s{sW}, 2
"""
    for t in range(8):
        s += f"""    s_xor_b32 s3, s4, {2*t}
    v_add_u32 v3, s3, v{TMP+2}
    v_xor_b32 v3, v3, v{TMP}
    v_lshl_add_u32 v{aVk+t}, v3, 4, v{TMP+3}
    v_add_u32 v{aV+t}, {VR}, v{aVk+t}
"""
    s += f"""    v_add_u32 v{aL16}, {X8R}, v{vL16}
    s_lshr_b32 s3, s{sW}, 1
    s_lshl_b32 s3, s3, 10
    s_and_b32 s4, s{sW}, 1
    s_lshl_b32 s4, s4, 3
    s_add_u32 s3, s3, s4
    s_add_u32 s3, s3, {P8R}
    v_add_u32 v{aP8w}, s3, v{vL16}
"""
    for k in range(4):
        s += f"    v_add_u32 v{TMP+4+k}, s{80+k}, v{aL16}\n"
    s += f"""    v_and_b32 v3, 3, v0
    v_cmp_eq_u32 vcc, 0, v3
    v_mov_b32 v3, 0x3f803f80
    v_mov_b32 v{NEGM}, 0
    v_cndmask_b32 v3, v{NEGM}, v3, vcc
"""
    for k in range(1, 12): s += f"    v_mov_b32 v{NEGM+k}, 0\n"
    for k in range(4): s += f"    v_accvgpr_write_b32 a{ONES+k}, v3\n"
    return s

def descriptor(kname, nv, acc):
    return f""".amdhsa_kernel {kname}
  .amdhsa_next_free_vgpr {nv}
  .amdhsa_next_free_sgpr 102
  .amdhsa_accum_offset {acc}
  .amdhsa_group_segment_fixed_size 0
  .amdhsa_kernarg_size 64
  .amdhsa_user_sgpr_count 2
  .amdhsa_user_sgpr_kernarg_segment_ptr 1
  .amdhsa_system_sgpr_workgroup_id_x 1
.end_amdhsa_kernel
"""

def emit(kname, lin, opt):
    s = prologue(kname)
    done2 = False
    for o in lin:
        if not done2 and o.kind not in ('L', 'S', 'G', 'N'):
            s += prologue2(); done2 = True
        s += (o.text if o.kind == 'X' else "    " + o.text) + "\n"
    s += f"L_{kname}_exit:\n    s_endpgm\n"
    return s

def reduce_kernel(kname):
    s = f""".globl {kname}
.p2align 8
.type {kname},@function
{kname}:
    s_cmp_ge_u32 s2, 576
    s_cbranch_scc1 L_{kname}_exit
    s_load_dwordx2 s[4:5], s[0:1], 40
    s_load_dwordx2 s[6:7], s[0:1], 56
    v_lshrrev_b32 v1, 6, v0
    v_and_b32 v0, 63, v0
    v_readfirstlane_b32 s16, v1               ; s = wave
    s_mul_hi_u32 s17, s2, 0x1c71c71d          ; bj = id / 9
    s_mul_i32 s18, s17, 9
    s_sub_u32 s18, s2, s18                    ; qt
    s_mul_i32 s19, s17, 147456
    s_lshl_b32 s20, s18, 12
    s_add_u32 s19, s19, s20
    s_lshl_b32 s20, s16, 10
    s_add_u32 s19, s19, s20
    s_add_u32 s19, s19, {WS_PART}
    v_lshlrev_b32 v1, 4, v0
    s_waitcnt lgkmcnt(0)
""" + srd(8, 6, 0x2000000) + srd(12, 4, 2359296)
    for k in range(4):
        s += f"    buffer_load_dwordx4 v[{4+4*k}:{7+4*k}], v1, s[8:11], s19 offen\n    s_add_u32 s19, s19, 36864\n"
    s += """    ; out offset: (b*144 + qt*16 + r)*1024 + j*256 + s*64 + pi(g)*16
    s_lshr_b32 s20, s17, 2
    s_mul_i32 s20, s20, 147456
    s_lshl_b32 s21, s18, 14
    s_add_u32 s20, s20, s21
    s_and_b32 s21, s17, 3
    s_lshl_b32 s21, s21, 8
    s_add_u32 s20, s20, s21
    s_lshl_b32 s21, s16, 6
    s_add_u32 s20, s20, s21
    v_and_b32 v2, 15, v0
    v_lshlrev_b32 v2, 10, v2
    v_and_b32 v3, 16, v0
    v_lshl_add_u32 v2, v3, 1, v2
    v_lshrrev_b32 v3, 5, v0
    v_lshl_add_u32 v2, v3, 4, v2
    s_waitcnt vmcnt(0)
"""
    for i in range(4):
        s += f"    v_lshlrev_b32 v20, 16, v{4+i}\n    v_and_b32 v21, 0xffff0000, v{4+i}\n"
        for k in range(1, 4):
            s += f"    v_lshlrev_b32 v22, 16, v{4+4*k+i}\n    v_and_b32 v23, 0xffff0000, v{4+4*k+i}\n    v_add_f32 v20, v20, v22\n    v_add_f32 v21, v21, v23\n"
        s += f"    v_cvt_pk_bf16_f32 v{24+i}, v20, v21\n"
    s += f"    buffer_store_dwordx4 v[24:27], v2, s[12:15], s20 offen\nL_{kname}_exit:\n    s_endpgm\n"
    return s

def build(opt):
    g = Gen(opt)
    for h in range(2):
        g.proj('Q%d' % h); dw = g.q_epilogue(h); g.attn(h, dw)
    k1 = emit('att_kernel', g.finish(), opt)
    g = Gen(dict(opt, cyc=[0, 1, 2, 3]))
    g.proj('W0'); g.proj('W1', first=False); g.w_epilogue()
    k2 = emit('prj_kernel', g.finish(), opt)
    k3 = reduce_kernel('red_kernel')
    s = "; fused MHA block: projection+attention, output projection partials, reduction\n"
    s += "; @launch kernel=att_kernel grid=(256,1,1) block=(256,1,1) lds=163840\n"
    s += "; @launch kernel=prj_kernel grid=(256,1,1) block=(256,1,1) lds=163840\n"
    s += "; @launch kernel=red_kernel grid=(576,1,1) block=(256,1,1) lds=0\n"
    s += '.amdgcn_target "amdgcn-amd-amdhsa--gfx950"\n.text\n' + k1 + k2 + k3
    s += '.section .rodata,"a"\n.p2align 6\n' + descriptor('att_kernel', 512, 256) + ".p2align 6\n" + descriptor('prj_kernel', 512, 256) + ".p2align 6\n" + descriptor('red_kernel', 32, 32)
    return s

if __name__ == "__main__":
    opt = {}
    out = sys.argv[1]
    for a in sys.argv[2:]:
        k, v = a.split("=")
        opt[k] = int(v) if v.lstrip('-').isdigit() else v.replace('+', ' ')
    open(out, "w").write(build(opt))
```

```python
import sys, math, struct
from sched import *

NAME = "standalone__mha_block_cached__near_ridge"
ACC1, OACC, LACC, NEGM, QF = 4, 76, 148, 160, 172
aK, aK8, aV, aVk, aX8 = 204, 208, 212, 220, 228
aL16, aP8w, vK, vV, vWQ, vWO, RCP, vL16 = 232, 233, 234, 235, 236, 237, 238, 241
TMP = 244
vX, aXo = OACC, OACC + 4
XF, FB, NFB, X8B, P8F, QF8, ONES = 0, 128, 12, 176, 184, 192, 208
SX, SK, SV, SWQ, SWO, SWS, SOUT = 8, 12, 16, 20, 24, 28, 32
sW, sB, sH0, sLw, sKV, sWQb, sXb, sX8, sC = 36, 37, 38, 39, 40, 41, 42, 43, 44
sOs, sO8, sD, sT, sWOb, sOl, sOl8, sPs, sP8, sHG, sJ = 45, 49, 50, 51, 52, 53, 54, 55, 59, 60, 61
KR, VR, X8R, MISC = 0, 65536, 131072, 147456
P8R, Q8R = MISC, MISC + 4096
WS_PART = 0x1400000
CSCALE = struct.unpack("<I", struct.pack("<f", math.log2(math.e) / math.sqrt(128.0)))[0]

class Gen:
    def __init__(self, opt):
        self.p = Prog(); self.opt = opt
        self.p.LAT_DS = opt.get('lat', 6)
        self.fb = 0; self.x8b = 0
        self.items = []
        self.bars = []
        self.slotseq = {'K': 0, 'V': 0}
        self.marks = []
    def M(self, d, a, b, c):
        o = Op('M', f"v_mfma_f32_16x16x32_bf16 {rs('v', d, 4)}, {rs(a[0], a[1], 4)}, {rs(b[0], b[1], 4)}, " + ("0" if c is None else rs('v', c, 4)),
               rd=R(*a, 4) + R(*b, 4) + ([] if c is None else R('v', c, 4)), wr=R('v', d, 4))
        o.ab = R(*a, 4) + R(*b, 4); o.c = [] if c is None else R('v', c, 4)
        return self.p.add(o)
    def D(self, dst, areg, off, lds, bar=None, **kw):
        o = Op('DS', f"ds_read_b128 {rs(dst[0], dst[1], 4)}, v{areg} offset:{off}", rd=R('v', areg), wr=R(*dst, 4), lds_rd=lds, **kw)
        self.p.add(o)
        if bar: self.p.dep(bar, o, 0)
        return o
    def T(self, dst, areg, off, lds, bar):
        o = Op('DS', f"ds_read_b64_tr_b16 {rs('a', dst, 2)}, v{areg} offset:{off}", rd=R('v', areg), wr=R('a', dst, 2), lds_rd=lds)
        self.p.add(o); self.p.dep(bar, o, 0)
        return o
    def V(self, text, rd, wr, kind='V', **kw):
        return self.p.add(Op(kind, text, rd=rd, wr=wr, **kw))
    def S(self, text, rd, wr, **kw):
        return self.p.add(Op('S', text, rd=rd, wr=wr, **kw))
    def bar(self, lead=None):
        if lead is None: lead = self.p.LAT_DS + 2
        pin = max(self.p.nm() - lead, -1)
        if self.bars: pin = max(pin, self.bars[-1].pin)
        o = Op('B', "s_barrier", pin=pin)
        self.p.add(o)
        if self.bars: self.p.dep(self.bars[-1], o, 0)
        self.bars.append(o)
        return o
    def nextfb(self):
        r = FB + 4 * self.fb; self.fb = (self.fb + 1) % NFB; return r
    def slot(self, part):
        order = self.opt.get('cyc', [3, 1, 2, 0])
        s = order[self.slotseq[part] % 4]; self.slotseq[part] += 1; return s
    def item(self, region, base, content, bar, src, key=None):
        self.items.append(dict(region=region, base=base, content=content, bar=bar, src=src, key=key))
    def ring(self, part, slot):
        return (part, slot), (KR if part == 'K' else VR) + slot * 16384

    def proj(self, name, first=True):
        p = self.p; isq = name[0] == 'Q'; ph = int(name[1])
        nt = self.opt.get('wflags', 'nt')
        self.marks.append((name, p.nm()))
        xslots = [0, 2, 0, 1]; wslots = [1, 3, 2, 0]
        start = p.nm()
        for n in range(4):
            b = self.bar()
            if name == 'Q0':
                est = -1 if n == 0 else start + (n - 1) * 72 + 30
                for a, part in enumerate('KV'):
                    reg, base = self.ring(part, xslots[n]); c = ('X', n, a)
                    self.item(reg, base, c, None, lambda j, n=n, a=a: (SX, vX + j, sXb, a * 16384 + n * 256 + j * 1024, self.opt.get('xflags', 'nt')), key=(est, 0, a))
                    for hs in range(2):
                        for u in range(2):
                            self.D(('a', XF + (a * 16 + n * 4 + hs * 2 + u) * 4), aXo + a * 4 + hs * 2 + u, xslots[n] * 16384,
                                   [((reg, j), c) for j in range(4)], private=True, est=est, soft=est + 8)
                if n == 0:
                    self.item('X8', X8R, 'X8', b, lambda j: (SX, vX + j, sX8, j * 1024, self.opt.get('xflags', 'nt')), key=(-1, 0, 2))
            if not isq:
                if n == 0:
                    self.o8reg = 'O8%d' % ph; self.o8base = X8R + ph * 16384
                    self.item(self.o8reg, self.o8base, self.o8reg, b, lambda j, ph=ph: (SWS, vL16, sOl8, ph * 36864 + j * 1024, self.opt.get('oflags', '')), key=(b.pin, -1, 0))
                for q in range(2):
                    self.S(f"s_add_u32 s{sT}, s{sOl}, {(2 * n + ph) * 36864 + q * 4096}", R('s', sOl), R('s', sT))
                    for s in range(4):
                        d = XF + (q * 16 + n * 4 + s) * 4
                        p.add(Op('G', f"buffer_load_dwordx4 {rs('a', d, 4)}, v{vL16}, {rs('s', SWS, 4)}, s{sT} offen offset:{s*1024} {self.opt.get('oflags', '')}",
                                 rd=R('v', vL16) + R('s', sT), wr=R('a', d, 4)))
            for hs, part in enumerate('KV'):
                sl = wslots[n] if name == 'Q0' else self.slot(part)
                reg, base = self.ring(part, sl); c = (name, n, hs)
                if isq:
                    self.item(reg, base, c, b, lambda j, n=n, hs=hs, ph=ph: (SWQ, vWQ, sWQb, ((2 * n + hs) * 64 + 4 * j) * 8192 + ph * 256, nt))
                else:
                    self.item(reg, base, c, b, lambda j, n=n, hs=hs, ph=ph: (SWO, vWO, sWOb, ((2 * n + ph) * 128 + 64 * hs + 16 * j) * 1024, nt))
                areg = aVk if part == 'K' else aV
                for u in range(2):
                    ks = n * 4 + hs * 2 + u
                    x8 = X8B + 4 * self.x8b; self.x8b ^= 1
                    if isq:
                        self.D(('a', x8), aX8 + hs * 2 + u, n * 4096, [(('X8', j), 'X8') for j in range(4)], bar=(b if name == 'Q0' and n == 0 else None))
                    else:
                        self.D(('a', x8), aL16, self.o8base - X8R + ks * 1024, [((self.o8reg, 2 * hs + u), self.o8reg)], bar=(b if n == 0 else None))
                    z = first and ks == 0
                    for t in range(8):
                        f = self.nextfb()
                        for a in range(2):
                            self.T(f + 2 * a, areg + t, sl * 16384 + (2 * u + a) * 1024, [((reg, 2 * u + a), c)], b)
                        for q in range(2):
                            d = ACC1 + (q * 8 + t) * 4
                            self.M(d, ('a', f), ('a', XF + (q * 16 + ks) * 4), None if z else d)
                        if t < 2:
                            d = ACC1 + 64 + t * 4
                            self.M(d, ('a', f), ('a', x8), None if z else d)
    def pack(self, src, dst, scale=None, swap=False):
        if scale is not None:
            for i in range(8):
                self.V(f"v_mul_f32 v{src+i}, {scale[0]}{scale[1]}, v{src+i}", R('v', src + i) + [scale], R('v', src + i))
        for i in range(4):
            self.V(f"v_cvt_pk_bf16_f32 v{dst+i}, v{src+2*i}, v{src+2*i+1}", R('v', src + 2 * i, 2), R('v', dst + i))
        if swap:
            for i in range(2):
                self.V(f"v_permlane16_swap_b32 v{dst+i}, v{dst+2+i}", [('v', dst + i), ('v', dst + 2 + i)], [('v', dst + i), ('v', dst + 2 + i)], kind='P')
    def q_epilogue(self, h):
        self.pack(ACC1 + 64, TMP, ('s', sC), True)
        dw = self.p.add(Op('DW', f"ds_write_b128 v{TMP+4}, {rs('v', TMP, 4)} offset:{Q8R - X8R}", rd=R('v', TMP, 5), lds_wr=[(('Q8', 0), ('Q8', h))]))
        for s in range(4):
            for q in range(2):
                self.pack(ACC1 + (q * 8 + 2 * s) * 4, QF + (q * 4 + s) * 4, ('s', sC), True)
        return dw
    def store(self, reg, sbase, lit, flags):
        self.S(f"s_add_u32 s{sT}, s{sbase}, {lit}", R('s', sbase), R('s', sT))
        return self.p.add(Op('ST', f"buffer_store_dwordx4 {rs('v', reg, 4)}, v{vL16}, {rs('s', SWS, 4)}, s{sT} offen {flags}", rd=R('v', reg, 4) + R('v', vL16) + R('s', sT)))
    def attn(self, h, dw):
        p = self.p
        self.marks.append(("A%d" % h, p.nm()))
        Sr = lambda j, q: ACC1 + (j * 2 + q) * 4
        S8 = ACC1 + 32; P8o = ACC1 + 60
        Pr = lambda u, q: ACC1 + 36 + ((u % 3) * 2 + q) * 4
        kv = self.opt.get('kvflags', 'nt')
        f0 = p.fence(f"L_att{h}:")
        b = self.bar(lead=1); b.needs.append(dw); p.dep(dw, b, 0)
        for s in range(4):
            self.D(('a', QF8 + 4 * s), TMP + 4 + s, Q8R - X8R, [(('Q8', 0), ('Q8', h))], bar=b)
        st = {}
        def kitem(i, b):
            sl = self.slot('K'); reg, base = self.ring('K', sl); c = ('K', h, i)
            self.item(reg, base, c, b, lambda j: (SK, vK, sKV, h * 131072 + i * 16384 + j * 1024, kv))
            st['k'] = (sl, reg, c, b)
        def vitem(i, b):
            sl = self.slot('V'); reg, base = self.ring('V', sl); c = ('V', h, i)
            self.item(reg, base, c, b, lambda j: (SV, vV, sKV, h * 131072 + i * 16384 + j * 1024, kv))
            st['v'] = (sl, reg, c, b)
        def softmax(src, dst):
            for i in range(4):
                self.V(f"v_exp_f32 v{src+i}, v{src+i}", R('v', src + i), R('v', src + i), kind='E')
            for i in range(2):
                self.V(f"v_cvt_pk_bf16_f32 v{dst+i}, v{src+2*i}, v{src+2*i+1}", R('v', src + 2 * i, 2), R('v', dst + i))
        def A8(i):
            sl, reg, c, b = st['k']
            for s in range(4):
                f = self.nextfb()
                self.D(('a', f), aK8 + s, sl * 16384, [((reg, j), c) for j in range(4)], bar=b)
                self.M(S8, ('a', f), ('a', QF8 + 4 * s), NEGM + 8 if s == 0 else S8)
            softmax(S8, P8o)
            st['dw'] = p.add(Op('DW', f"ds_write_b64 v{aP8w}, {rs('v', P8o, 2)} offset:{(i & 1) * 2048}", rd=R('v', P8o, 2) + R('v', aP8w),
                                lds_wr=[(('P8', i & 1), ('P8', h, i))]))
            p.dep(b, st['dw'], 0)
        def A(u):
            sl, reg, c, b = st['k']
            for jj in range(2):
                j = (u & 1) * 2 + jj
                for s in range(4):
                    f = self.nextfb()
                    self.D(('a', f), aK + s, sl * 16384 + j * 1024, [((reg, j), c)], bar=b)
                    for q in range(2):
                        self.M(Sr(j, q), ('a', f), ('v', QF + (q * 4 + s) * 4), NEGM + 4 * q if s == 0 else Sr(j, q))
                for q in range(2):
                    softmax(Sr(j, q), Pr(u, q) + 2 * jj)
        def B(u):
            sl, reg, c, b = st['v']; uu = u & 1; i = u >> 1
            z = u == 0
            p8 = P8F + 4 * uu
            self.D(('a', p8), aL16, P8R - X8R + (i & 1) * 2048 + uu * 1024, [(('P8', i & 1), ('P8', h, i))], bar=b)
            for t in range(8):
                f = self.nextfb()
                for a in range(2):
                    self.T(f + 2 * a, aV + t, sl * 16384 + (2 * uu + a) * 1024, [((reg, 2 * uu + a), c)], b)
                for q in range(2):
                    d = OACC + (q * 8 + t) * 4
                    self.M(d, ('a', f), ('v', Pr(u, q)), None if z else d)
                if t >= 6:
                    d = OACC + 64 + (t - 6) * 4
                    self.M(d, ('a', f), ('a', p8), None if z else d)
                if t in (1, 3):
                    q = t >> 1; d = LACC + 4 * q
                    self.M(d, ('a', ONES), ('v', Pr(u, q)), None if z else d)
                if t == 5:
                    d = LACC + 8
                    self.M(d, ('a', ONES), ('a', p8), None if z else d)
        kitem(0, b)
        A8(0); A(0); A(1)
        for i in range(8):
            b = self.bar(); b.needs.append(st['dw']); p.dep(st['dw'], b, 4)
            vitem(i, b)
            if i < 7: kitem(i + 1, b)
            B(2 * i)
            if i < 7: A8(i + 1); A(2 * i + 2)
            B(2 * i + 1)
            if i < 7: A(2 * i + 3)
        of = self.opt.get('ostflags', '')
        for q in range(3):
            self.V(f"v_rcp_f32 v{RCP+q}, v{LACC+4*q}", R('v', LACC + 4 * q), R('v', RCP + q), kind='E')
        for s in range(4):
            for q in range(2):
                r = OACC + (q * 8 + 2 * s) * 4
                self.pack(r, r, ('v', RCP + q))
                self.store(r, sOs + s, h * 36864 + q * 4096, of)
        self.pack(OACC + 64, OACC + 64, ('v', RCP + 2))
        self.store(OACC + 64, sO8, h * 36864, of)
    def w_epilogue(self):
        pf = self.opt.get('pstflags', '')
        self.pack(ACC1 + 64, ACC1 + 64, None, True)
        self.store(ACC1 + 64, sP8, 0, pf)
        for s in range(4):
            for q in range(2):
                r = ACC1 + (q * 8 + 2 * s) * 4
                self.pack(r, r, None, True)
                self.store(r, sPs + s, q * 4096, pf)
    def make_dma(self):
        p = self.p
        readers = {}
        for o in p.ops:
            for pc, c in o.lds_rd: readers.setdefault((pc, c), []).append(o)
        def firstm(o):
            return min(s.idx for s, _ in o.succs if s.kind == 'M' and o in s.needs)
        pieces = []
        for n, it in enumerate(self.items):
            for j in range(4):
                rd = readers[((it['region'], j), it['content'])]
                key = it['key'] if it['key'] is not None else (it['bar'].pin, 1, min(firstm(o) for o in rd))
                pieces.append((key, n, j, it, rd))
        pieces.sort(key=lambda x: (x[0], x[1], x[2]))
        prevrd = {}; prevL = None
        p.fence_op = None
        self.dmas = []
        for key, n, j, it, rd in pieces:
            srd, vr, sb, lit, fl = it['src'](j)
            s1 = self.S(f"s_add_u32 m0, s{sLw}, {it['base'] + j * 1024}", R('s', sLw), [('m0', 0)], nofence=True)
            s2 = self.S(f"s_add_u32 s{sD}, s{sb}, {lit}", R('s', sb), R('s', sD), nofence=True)
            L = Op('L', f"buffer_load_dwordx4 v{vr}, {rs('s', srd, 4)}, s{sD} offen {fl} lds", rd=[('m0', 0)] + R('s', sD),
                   lds_wr=[((it['region'], j), it['content'])], nofence=True)
            p.add(L); L.rd += R('v', vr)
            if prevL is not None: p.dep(prevL, L, self.opt.get('dspace', 4))
            prevL = L
            old = prevrd.get((it['region'], j))
            if old:
                if old[0].private:
                    for o in old: L.needs.append(o); p.dep(o, L, p.LAT_DS)
                else:
                    last = max(firstm(o) for o in old)
                    fb = next(b for b in self.bars if b.pin >= last)
                    p.dep(fb, L, 0)
            prevrd[(it['region'], j)] = rd
            if it['bar'] is not None:
                it['bar'].needs.append(L); p.dep(L, it['bar'], 200)
            else:
                for o in rd: o.needs.append(L); p.dep(L, o, 0)
                L.soft = key[0] - 200
            self.dmas.append(L)
    def finish(self):
        self.make_dma()
        lin = self.p.schedule()
        lin = insert_waits(lin)
        lin, nops = fix_hazards(lin)
        verify_lds(lin)
        t, res = stats(lin)
        cum = 0; rep = []
        mk = self.marks + [("end", len(res))]
        for (n0, i0), (n1, i1) in zip(mk, mk[1:]):
            rep.append(f"{n0}:{sum(res[i0:i1])}/{16*(i1-i0)}")
        print(f"; instrs {len(lin)} mfma {len(self.p.mf)} nops {nops} est cycles {t}  " + " ".join(rep), file=sys.stderr)
        return lin

def srd(reg, ptr, size):
    return f"    s_mov_b32 s{reg}, s{ptr}\n    s_mov_b32 s{reg+1}, s{ptr+1}\n    s_mov_b32 s{reg+2}, {size}\n    s_mov_b32 s{reg+3}, 0x20000\n"

def prologue(kname):
    s = f""".globl {kname}
.p2align 8
.type {kname},@function
{kname}:
    s_cmp_ge_u32 s2, 256
    s_cbranch_scc1 L_{kname}_exit
    s_load_dwordx16 s[64:79], s[0:1], 0
    v_lshrrev_b32 v1, 6, v0
    v_and_b32 v0, 63, v0
    v_readfirstlane_b32 s{sW}, v1
    s_and_b32 s3, s2, 7
    s_lshr_b32 s4, s2, 3
    s_and_b32 s5, s3, 1
    s_lshl_b32 s5, s5, 3
    s_and_b32 s6, s4, 7
    s_add_u32 s{sB}, s5, s6
    s_lshr_b32 s{sHG}, s3, 1
    s_lshr_b32 s{sJ}, s4, 3
    s_lshl_b32 s5, s{sHG}, 3
    s_lshl_b32 s6, s{sJ}, 1
    s_add_u32 s{sH0}, s5, s6
    s_lshl_b32 s{sLw}, s{sW}, 12
    s_lshl_b32 s5, s{sB}, 5
    s_add_u32 s7, s5, s{sH0}
    s_lshl_b32 s{sKV}, s7, 17
    s_lshl_b32 s{sWQb}, s{sH0}, 8
    s_mul_i32 s{sXb}, s{sB}, 147456
    s_mul_i32 s6, s{sW}, 32512
    s_sub_u32 s6, 131072, s6
    s_add_u32 s{sX8}, s{sXb}, s6
    s_mov_b32 s{sC}, {CSCALE:#x}
    s_mul_i32 s7, s7, 36864
    s_lshl_b32 s6, s{sW}, 13
    s_add_u32 s6, s6, s7
"""
    for i in range(4):
        s += f"    s_xor_b32 s3, s{sW}, {i}\n    s_lshl_b32 s{80+i}, s3, 10\n    s_add_u32 s{sOs+i}, s6, s{80+i}\n"
    s += f"""    s_add_u32 s7, s7, 32768
    s_add_u32 s{sO8}, s7, s83
    s_lshl_b32 s3, s{sHG}, 20
    s_lshl_b32 s4, s{sJ}, 8
    s_add_u32 s{sWOb}, s3, s4
    s_lshl_b32 s3, s{sHG}, 3
    s_add_u32 s3, s3, s5
    s_mul_i32 s3, s3, 36864
    s_lshl_b32 s4, s{sW}, 13
    s_add_u32 s{sOl}, s3, s4
    s_mul_i32 s4, s{sW}, 73728
    s_add_u32 s4, s4, 32768
    s_add_u32 s{sOl8}, s3, s4
    s_lshl_b32 s3, s{sB}, 4
    s_lshl_b32 s4, s{sJ}, 2
    s_add_u32 s3, s3, s4
    s_add_u32 s3, s3, s{sHG}
    s_mul_i32 s3, s3, 36864
    s_add_u32 s3, s3, {WS_PART}
    s_lshl_b32 s4, s{sW}, 13
    s_add_u32 s4, s4, s3
"""
    for i in range(4):
        s += f"    s_add_u32 s{sPs+i}, s4, s{80+i}\n"
    s += f"""    s_add_u32 s3, s3, 32768
    s_add_u32 s{sP8}, s3, s80
    v_and_b32 v1, 15, v0
    v_lshrrev_b32 v2, 4, v0
    v_lshlrev_b32 v{vL16}, 4, v0
    s_lshl_b32 s3, s{sW}, 2
    v_add_u32 v3, s3, v2                      ; 4w+i
    v_xor_b32 v{TMP}, v1, v3
    v_lshlrev_b32 v{TMP}, 4, v{TMP}
    v_lshl_add_u32 v{TMP+1}, v2, 8, s{sLw}      ; w*4096 + i*256
    v_add_u32 v{vK}, v{TMP}, v{TMP+1}
    v_and_b32 v{TMP}, 7, v3
    v_lshlrev_b32 v{TMP}, 1, v{TMP}
    v_xor_b32 v{TMP}, v1, v{TMP}
    v_lshlrev_b32 v{TMP}, 4, v{TMP}
    v_add_u32 v{vV}, v{TMP}, v{TMP+1}
    v_lshl_add_u32 v{vWO}, v3, 10, v{TMP}
    s_lshl_b32 s3, s{sW}, 4
    v_add_u32 v3, s3, v2
    v_lshl_add_u32 v{vWQ}, v3, 13, v{TMP}
    s_lshl_b32 s3, s{sW}, 15
"""
    for j in range(4):
        s += f"""    v_add_u32 v3, {4*j}, v2
    v_xor_b32 v{TMP}, v1, v3
    v_lshlrev_b32 v{TMP}, 4, v{TMP}
    v_lshl_add_u32 v{TMP}, v3, 10, v{TMP}
    v_add_u32 v{TMP}, s3, v{TMP}
    v_subrev_u32 v{vX+j}, {1024*j}, v{TMP}
"""
    s += "    s_waitcnt lgkmcnt(0)\n"
    s += srd(SX, 64, 2359296) + srd(SK, 66, 67108864) + srd(SV, 68, 67108864) + srd(SWQ, 70, 4194304) + srd(SWO, 72, 4194304) + srd(SWS, 78, 0x2000000)
    return s

def prologue2():
    s = f"""    ; x fragment read addresses
    v_lshlrev_b32 v3, 1, v2
"""
    for k in range(4):
        hs, u = k >> 1, k & 1
        s += f"""    v_add_u32 v{TMP}, {8*hs+u}, v3
    v_xor_b32 v{TMP}, v{TMP}, v1
    v_lshlrev_b32 v{TMP}, 4, v{TMP}
    v_lshl_add_u32 v{TMP}, v1, 8, v{TMP}
    v_add_u32 v{aX8+k}, {X8R}, v{TMP}
    v_add_u32 v{aXo+k}, s{sLw}, v{TMP}
    v_add_u32 v{aXo+4+k}, {VR}, v{aXo+k}
"""
    s += f"""    ; K read addresses
    v_and_b32 v{TMP}, 1, v2
    v_lshlrev_b32 v{TMP}, 1, v{TMP}
    v_lshrrev_b32 v{TMP+1}, 1, v2
    v_or_b32 v{TMP}, v{TMP}, v{TMP+1}           ; pi(g)
    v_lshrrev_b32 v{TMP+1}, 2, v1               ; r>>2
    v_and_b32 v{TMP+2}, 3, v1                   ; r&3
    v_lshlrev_b32 v{TMP+3}, 12, v{TMP+1}
    v_lshl_add_u32 v{TMP+3}, v{TMP+2}, 8, v{TMP+3}
"""
    for k in range(4):
        s += f"""    s_lshr_b32 s3, s{80+k}, 8
    v_add_u32 v3, s3, v{TMP}
    v_xor_b32 v3, v3, v1
    v_lshl_add_u32 v{aK+k}, v3, 4, v{TMP+3}
    v_add_u32 v{aK8+k}, s80, v{aK+k}
"""
    s += f"""    ; V / W read addresses: r' = r>>2, c = r&3
    v_and_b32 v{TMP}, 1, v2
    v_lshl_add_u32 v{TMP}, v{TMP}, 2, v{TMP+1}
    v_lshlrev_b32 v{TMP}, 1, v{TMP}             ; f
    v_lshlrev_b32 v{TMP+3}, 12, v2
    v_lshl_add_u32 v{TMP+3}, v{TMP+1}, 8, v{TMP+3}
    v_and_b32 v3, 1, v1
    v_lshl_add_u32 v{TMP+3}, v3, 3, v{TMP+3}
    v_lshrrev_b32 v{TMP+2}, 1, v{TMP+2}         ; c>>1
    s_lshl_b32 s4, s{sW}, 2
"""
    for t in range(8):
        s += f"""    s_xor_b32 s3, s4, {2*t}
    v_add_u32 v3, s3, v{TMP+2}
    v_xor_b32 v3, v3, v{TMP}
    v_lshl_add_u32 v{aVk+t}, v3, 4, v{TMP+3}
    v_add_u32 v{aV+t}, {VR}, v{aVk+t}
"""
    s += f"""    v_add_u32 v{aL16}, {X8R}, v{vL16}
    s_lshr_b32 s3, s{sW}, 1
    s_lshl_b32 s3, s3, 10
    s_and_b32 s4, s{sW}, 1
    s_lshl_b32 s4, s4, 3
    s_add_u32 s3, s3, s4
    s_add_u32 s3, s3, {P8R}
    v_add_u32 v{aP8w}, s3, v{vL16}
"""
    for k in range(4):
        s += f"    v_add_u32 v{TMP+4+k}, s{80+k}, v{aL16}\n"
    s += f"""    v_and_b32 v3, 3, v0
    v_cmp_eq_u32 vcc, 0, v3
    v_mov_b32 v3, 0x3f803f80
    v_mov_b32 v{NEGM}, 0
    v_cndmask_b32 v3, v{NEGM}, v3, vcc
"""
    for k in range(1, 12): s += f"    v_mov_b32 v{NEGM+k}, 0\n"
    for k in range(4): s += f"    v_accvgpr_write_b32 a{ONES+k}, v3\n"
    return s

def descriptor(kname, nv, acc):
    return f""".amdhsa_kernel {kname}
  .amdhsa_next_free_vgpr {nv}
  .amdhsa_next_free_sgpr 102
  .amdhsa_accum_offset {acc}
  .amdhsa_group_segment_fixed_size 0
  .amdhsa_kernarg_size 64
  .amdhsa_user_sgpr_count 2
  .amdhsa_user_sgpr_kernarg_segment_ptr 1
  .amdhsa_system_sgpr_workgroup_id_x 1
.end_amdhsa_kernel
"""

def emit(kname, lin, opt):
    st = opt.get('stamps') == kname[:3]
    n = [0]
    def stamp():
        k = n[0]; n[0] += 1
        a = 88 + 4 * (k & 1); b = 88 + 4 * ((k + 1) & 1)
        t = f"    s_memrealtime s[{a}:{a+1}]\n    s_memtime s[{a+2}:{a+3}]\n"
        if k > 0: t += f"    v_writelane_b32 v242, s{b}, {k-1}\n    v_writelane_b32 v243, s{b+2}, {k-1}\n"
        return t
    s = prologue(kname)
    if st: s = s.replace("    s_load_dwordx16", stamp() + "    s_load_dwordx16")
    done2 = False
    for o in lin:
        if not done2 and o.kind not in ('L', 'S', 'G', 'N'):
            s += prologue2(); done2 = True
        s += (o.text if o.kind == 'X' else "    " + o.text) + "\n"
        if st and o.kind == 'B': s += stamp()
    if st:
        s += stamp() + "    s_waitcnt vmcnt(0) lgkmcnt(0)\n" + stamp() + "    s_waitcnt lgkmcnt(0)\n" + stamp()
        s += f"""    s_lshl_b32 s3, s2, 2
    s_add_u32 s3, s3, s{sW}
    s_lshl_b32 s3, s3, 8
    s_add_u32 s3, s3, 0x3000000
    s_mov_b32 s{SWS+2}, 0x4000000
    v_lshrrev_b32 v1, 2, v{vL16}
    s_mov_b64 exec, 0xffffffff
    buffer_store_dword v242, v1, s[{SWS}:{SWS+3}], s3 offen
    buffer_store_dword v243, v1, s[{SWS}:{SWS+3}], s3 offen offset:128
"""
        if opt.get('dbgwg') is not None:
            s += f"""    s_cmp_lg_u32 s2, {opt['dbgwg']}
    s_cbranch_scc1 L_{kname}_exit
    s_cmp_lg_u32 s{sW}, 0
    s_cbranch_scc1 L_{kname}_exit
    s_load_dwordx2 s[4:5], s[0:1], 48
    v_readlane_b32 s3, v242, 0
    s_nop 3
    v_subrev_u32 v242, s3, v242
    v_lshrrev_b32 v1, 1, v1
    s_waitcnt lgkmcnt(0)
    global_store_short v1, v242, s[4:5]
"""
        print("; stamps", n[0] - 1, file=sys.stderr)
    s += f"L_{kname}_exit:\n    s_endpgm\n"
    return s

def reduce_kernel(kname):
    s = f""".globl {kname}
.p2align 8
.type {kname},@function
{kname}:
    s_cmp_ge_u32 s2, 576
    s_cbranch_scc1 L_{kname}_exit
    s_load_dwordx2 s[4:5], s[0:1], 40
    s_load_dwordx2 s[6:7], s[0:1], 56
    v_lshrrev_b32 v1, 6, v0
    v_and_b32 v0, 63, v0
    v_readfirstlane_b32 s16, v1               ; s = wave
    s_mul_hi_u32 s17, s2, 0x1c71c71d          ; bj = id / 9
    s_mul_i32 s18, s17, 9
    s_sub_u32 s18, s2, s18                    ; qt
    s_mul_i32 s19, s17, 147456
    s_lshl_b32 s20, s18, 12
    s_add_u32 s19, s19, s20
    s_lshl_b32 s20, s16, 10
    s_add_u32 s19, s19, s20
    s_add_u32 s19, s19, {WS_PART}
    v_lshlrev_b32 v1, 4, v0
    s_waitcnt lgkmcnt(0)
""" + srd(8, 6, 0x2000000) + srd(12, 4, 2359296)
    for k in range(4):
        s += f"    buffer_load_dwordx4 v[{4+4*k}:{7+4*k}], v1, s[8:11], s19 offen\n    s_add_u32 s19, s19, 36864\n"
    s += """    ; out offset: (b*144 + qt*16 + r)*1024 + j*256 + s*64 + pi(g)*16
    s_lshr_b32 s20, s17, 2
    s_mul_i32 s20, s20, 147456
    s_lshl_b32 s21, s18, 14
    s_add_u32 s20, s20, s21
    s_and_b32 s21, s17, 3
    s_lshl_b32 s21, s21, 8
    s_add_u32 s20, s20, s21
    s_lshl_b32 s21, s16, 6
    s_add_u32 s20, s20, s21
    v_and_b32 v2, 15, v0
    v_lshlrev_b32 v2, 10, v2
    v_and_b32 v3, 16, v0
    v_lshl_add_u32 v2, v3, 1, v2
    v_lshrrev_b32 v3, 5, v0
    v_lshl_add_u32 v2, v3, 4, v2
    s_waitcnt vmcnt(0)
"""
    for i in range(4):
        s += f"    v_lshlrev_b32 v20, 16, v{4+i}\n    v_and_b32 v21, 0xffff0000, v{4+i}\n"
        for k in range(1, 4):
            s += f"    v_lshlrev_b32 v22, 16, v{4+4*k+i}\n    v_and_b32 v23, 0xffff0000, v{4+4*k+i}\n    v_add_f32 v20, v20, v22\n    v_add_f32 v21, v21, v23\n"
        s += f"    v_cvt_pk_bf16_f32 v{24+i}, v20, v21\n"
    s += f"    buffer_store_dwordx4 v[24:27], v2, s[12:15], s20 offen\nL_{kname}_exit:\n    s_endpgm\n"
    return s

def build(opt):
    g = Gen(opt)
    for h in range(2):
        g.proj('Q%d' % h); dw = g.q_epilogue(h); g.attn(h, dw)
    k1 = emit('att_kernel', g.finish(), opt)
    g = Gen(dict(opt, cyc=[0, 1, 2, 3]))
    g.proj('W0'); g.proj('W1', first=False); g.w_epilogue()
    k2 = emit('prj_kernel', g.finish(), opt)
    k3 = reduce_kernel('red_kernel')
    s = "; fused MHA block: projection+attention, output projection partials, reduction\n"
    s += "; @launch kernel=att_kernel grid=(256,1,1) block=(256,1,1) lds=163840\n"
    s += "; @launch kernel=prj_kernel grid=(256,1,1) block=(256,1,1) lds=163840\n"
    s += "; @launch kernel=red_kernel grid=(576,1,1) block=(256,1,1) lds=0\n"
    s += '.amdgcn_target "amdgcn-amd-amdhsa--gfx950"\n.text\n' + k1 + k2 + k3
    s += '.section .rodata,"a"\n.p2align 6\n' + descriptor('att_kernel', 512, 256) + ".p2align 6\n" + descriptor('prj_kernel', 512, 256) + ".p2align 6\n" + descriptor('red_kernel', 32, 32)
    return s

if __name__ == "__main__":
    opt = {}
    out = sys.argv[1]
    for a in sys.argv[2:]:
        k, v = a.split("=")
        opt[k] = int(v) if v.lstrip('-').isdigit() else v.replace('+', ' ')
    open(out, "w").write(build(opt))
```

```python
import sys, math, struct
from sched import *

NAME = "standalone__mha_block_cached__near_ridge"
ACC1, OACC, LACC, NEGM, QF = 4, 76, 148, 160, 172
aK, aK8, aV, aVk, aX8 = 204, 208, 212, 220, 228
aL16, aP8w, vK, vV, vWQ, vWO, RCP, vL16 = 232, 233, 234, 235, 236, 237, 238, 241
TMP = 244
vX, aXo = OACC, OACC + 4
XF, FB, NFB, X8B, P8F, QF8, ONES = 0, 128, 12, 176, 184, 192, 208
SX, SK, SV, SWQ, SWO, SWS, SOUT = 8, 12, 16, 20, 24, 28, 32
sW, sB, sH0, sLw, sKV, sWQb, sXb, sX8, sC = 36, 37, 38, 39, 40, 41, 42, 43, 44
sOs, sO8, sD, sT, sWOb, sOl, sOl8, sPs, sP8, sHG, sJ = 45, 49, 50, 51, 52, 53, 54, 55, 59, 60, 61
KR, VR, X8R, MISC = 0, 65536, 131072, 147456
P8R, Q8R = MISC, MISC + 4096
WS_PART = 0x1400000
CSCALE = struct.unpack("<I", struct.pack("<f", math.log2(math.e) / math.sqrt(128.0)))[0]

class Gen:
    def __init__(self, opt):
        self.p = Prog(); self.opt = opt
        self.p.LAT_DS = opt.get('lat', 6)
        self.fb = 0; self.x8b = 0
        self.items = []
        self.bars = []
        self.slotseq = {'K': 0, 'V': 0}
        self.marks = []
    def M(self, d, a, b, c):
        o = Op('M', f"v_mfma_f32_16x16x32_bf16 {rs('v', d, 4)}, {rs(a[0], a[1], 4)}, {rs(b[0], b[1], 4)}, " + ("0" if c is None else rs('v', c, 4)),
               rd=R(*a, 4) + R(*b, 4) + ([] if c is None else R('v', c, 4)), wr=R('v', d, 4))
        o.ab = R(*a, 4) + R(*b, 4); o.c = [] if c is None else R('v', c, 4)
        return self.p.add(o)
    def D(self, dst, areg, off, lds, bar=None, **kw):
        o = Op('DS', f"ds_read_b128 {rs(dst[0], dst[1], 4)}, v{areg} offset:{off}", rd=R('v', areg), wr=R(*dst, 4), lds_rd=lds, **kw)
        self.p.add(o)
        if bar: self.p.dep(bar, o, 0)
        return o
    def T(self, dst, areg, off, lds, bar):
        o = Op('DS', f"ds_read_b64_tr_b16 {rs('a', dst, 2)}, v{areg} offset:{off}", rd=R('v', areg), wr=R('a', dst, 2), lds_rd=lds)
        self.p.add(o); self.p.dep(bar, o, 0)
        return o
    def V(self, text, rd, wr, kind='V', **kw):
        return self.p.add(Op(kind, text, rd=rd, wr=wr, **kw))
    def S(self, text, rd, wr, **kw):
        return self.p.add(Op('S', text, rd=rd, wr=wr, **kw))
    def bar(self, lead=None):
        if lead is None: lead = self.p.LAT_DS + 2
        pin = max(self.p.nm() - lead, -1)
        if self.bars: pin = max(pin, self.bars[-1].pin)
        o = Op('B', "s_barrier", pin=pin)
        self.p.add(o)
        if self.bars: self.p.dep(self.bars[-1], o, 0)
        self.bars.append(o)
        return o
    def nextfb(self):
        r = FB + 4 * self.fb; self.fb = (self.fb + 1) % NFB; return r
    def slot(self, part):
        order = self.opt.get('cyc', [3, 1, 2, 0])
        s = order[self.slotseq[part] % 4]; self.slotseq[part] += 1; return s
    def item(self, region, base, content, bar, src, key=None):
        self.items.append(dict(region=region, base=base, content=content, bar=bar, src=src, key=key))
    def ring(self, part, slot):
        return (part, slot), (KR if part == 'K' else VR) + slot * 16384

    def proj(self, name, first=True):
        p = self.p; isq = name[0] == 'Q'; ph = int(name[1])
        nt = self.opt.get('wflags', 'nt')
        self.marks.append((name, p.nm()))
        xslots = [0, 2, 0, 1]; wslots = [1, 3, 2, 0]
        start = p.nm()
        for n in range(4):
            b = self.bar()
            if name == 'Q0':
                est = -1 if n == 0 else start + (n - 1) * 72 + 30
                for a, part in enumerate('KV'):
                    reg, base = self.ring(part, xslots[n]); c = ('X', n, a)
                    self.item(reg, base, c, None, lambda j, n=n, a=a: (SX, vX + j, sXb, a * 16384 + n * 256 + j * 1024, self.opt.get('xflags', 'nt')), key=(est, 0, a))
                    for hs in range(2):
                        for u in range(2):
                            self.D(('a', XF + (a * 16 + n * 4 + hs * 2 + u) * 4), aXo + a * 4 + hs * 2 + u, xslots[n] * 16384,
                                   [((reg, j), c) for j in range(4)], private=True, est=est, soft=est + 8)
                if n == 0:
                    self.item('X8', X8R, 'X8', b, lambda j: (SX, vX + j, sX8, j * 1024, self.opt.get('xflags', 'nt')), key=(-1, 0, 2))
            if not isq:
                if n == 0:
                    self.o8reg = 'O8%d' % ph; self.o8base = X8R + ph * 16384
                    self.item(self.o8reg, self.o8base, self.o8reg, b, lambda j, ph=ph: (SWS, vL16, sOl8, ph * 36864 + j * 1024, self.opt.get('oflags', '')), key=(b.pin, -1, 0))
                for q in range(2):
                    self.S(f"s_add_u32 s{sT}, s{sOl}, {(2 * n + ph) * 36864 + q * 4096}", R('s', sOl), R('s', sT))
                    for s in range(4):
                        d = XF + (q * 16 + n * 4 + s) * 4
                        p.add(Op('G', f"buffer_load_dwordx4 {rs('a', d, 4)}, v{vL16}, {rs('s', SWS, 4)}, s{sT} offen offset:{s*1024} {self.opt.get('oflags', '')}",
                                 rd=R('v', vL16) + R('s', sT), wr=R('a', d, 4)))
            for hs, part in enumerate('KV'):
                sl = wslots[n] if name == 'Q0' else self.slot(part)
                reg, base = self.ring(part, sl); c = (name, n, hs)
                if isq:
                    self.item(reg, base, c, b, lambda j, n=n, hs=hs, ph=ph: (SWQ, vWQ, sWQb, ((2 * n + hs) * 64 + 4 * j) * 8192 + ph * 256, nt))
                else:
                    self.item(reg, base, c, b, lambda j, n=n, hs=hs, ph=ph: (SWO, vWO, sWOb, ((2 * n + ph) * 128 + 64 * hs + 16 * j) * 1024, nt))
                areg = aVk if part == 'K' else aV
                for u in range(2):
                    ks = n * 4 + hs * 2 + u
                    x8 = X8B + 4 * self.x8b; self.x8b ^= 1
                    if isq:
                        self.D(('a', x8), aX8 + hs * 2 + u, n * 4096, [(('X8', j), 'X8') for j in range(4)], bar=(b if name == 'Q0' and n == 0 else None))
                    else:
                        self.D(('a', x8), aL16, self.o8base - X8R + ks * 1024, [((self.o8reg, 2 * hs + u), self.o8reg)], bar=(b if n == 0 else None))
                    z = first and ks == 0
                    for t in range(8):
                        f = self.nextfb()
                        for a in range(2):
                            self.T(f + 2 * a, areg + t, sl * 16384 + (2 * u + a) * 1024, [((reg, 2 * u + a), c)], b)
                        for q in range(2):
                            d = ACC1 + (q * 8 + t) * 4
                            self.M(d, ('a', f), ('a', XF + (q * 16 + ks) * 4), None if z else d)
                        if t < 2:
                            d = ACC1 + 64 + t * 4
                            self.M(d, ('a', f), ('a', x8), None if z else d)
    def pack(self, src, dst, scale=None, swap=False):
        if scale is not None:
            for i in range(8):
                self.V(f"v_mul_f32 v{src+i}, {scale[0]}{scale[1]}, v{src+i}", R('v', src + i) + [scale], R('v', src + i))
        for i in range(4):
            self.V(f"v_cvt_pk_bf16_f32 v{dst+i}, v{src+2*i}, v{src+2*i+1}", R('v', src + 2 * i, 2), R('v', dst + i))
        if swap:
            for i in range(2):
                self.V(f"v_permlane16_swap_b32 v{dst+i}, v{dst+2+i}", [('v', dst + i), ('v', dst + 2 + i)], [('v', dst + i), ('v', dst + 2 + i)], kind='P')
    def q_epilogue(self, h):
        self.pack(ACC1 + 64, TMP, ('s', sC), True)
        dw = self.p.add(Op('DW', f"ds_write_b128 v{TMP+4}, {rs('v', TMP, 4)} offset:{Q8R - X8R}", rd=R('v', TMP, 5), lds_wr=[(('Q8', 0), ('Q8', h))]))
        for s in range(4):
            for q in range(2):
                self.pack(ACC1 + (q * 8 + 2 * s) * 4, QF + (q * 4 + s) * 4, ('s', sC), True)
        return dw
    def store(self, reg, sbase, lit, flags):
        self.S(f"s_add_u32 s{sT}, s{sbase}, {lit}", R('s', sbase), R('s', sT))
        return self.p.add(Op('ST', f"buffer_store_dwordx4 {rs('v', reg, 4)}, v{vL16}, {rs('s', SWS, 4)}, s{sT} offen {flags}", rd=R('v', reg, 4) + R('v', vL16) + R('s', sT)))
    def attn(self, h, dw):
        p = self.p
        self.marks.append(("A%d" % h, p.nm()))
        Sr = lambda j, q: ACC1 + (j * 2 + q) * 4
        S8 = ACC1 + 32; P8o = ACC1 + 60
        Pr = lambda u, q: ACC1 + 36 + ((u % 3) * 2 + q) * 4
        kv = self.opt.get('kvflags', 'nt')
        f0 = p.fence(f"L_att{h}:")
        b = self.bar(lead=1); b.needs.append(dw); p.dep(dw, b, 0)
        for s in range(4):
            self.D(('a', QF8 + 4 * s), TMP + 4 + s, Q8R - X8R, [(('Q8', 0), ('Q8', h))], bar=b)
        st = {}
        def kitem(i, b):
            sl = self.slot('K'); reg, base = self.ring('K', sl); c = ('K', h, i)
            self.item(reg, base, c, b, lambda j: (SK, vK, sKV, h * 131072 + i * 16384 + j * 1024, kv))
            st['k'] = (sl, reg, c, b)
        def vitem(i, b):
            sl = self.slot('V'); reg, base = self.ring('V', sl); c = ('V', h, i)
            self.item(reg, base, c, b, lambda j: (SV, vV, sKV, h * 131072 + i * 16384 + j * 1024, kv))
            st['v'] = (sl, reg, c, b)
        def softmax(src, dst):
            for i in range(4):
                self.V(f"v_exp_f32 v{src+i}, v{src+i}", R('v', src + i), R('v', src + i), kind='E')
            for i in range(2):
                self.V(f"v_cvt_pk_bf16_f32 v{dst+i}, v{src+2*i}, v{src+2*i+1}", R('v', src + 2 * i, 2), R('v', dst + i))
        def A8(i):
            sl, reg, c, b = st['k']
            for s in range(4):
                f = self.nextfb()
                self.D(('a', f), aK8 + s, sl * 16384, [((reg, j), c) for j in range(4)], bar=b)
                self.M(S8, ('a', f), ('a', QF8 + 4 * s), NEGM + 8 if s == 0 else S8)
            softmax(S8, P8o)
            st['dw'] = p.add(Op('DW', f"ds_write_b64 v{aP8w}, {rs('v', P8o, 2)} offset:{(i & 1) * 2048}", rd=R('v', P8o, 2) + R('v', aP8w),
                                lds_wr=[(('P8', i & 1), ('P8', h, i))]))
            p.dep(b, st['dw'], 0)
        def A(u):
            sl, reg, c, b = st['k']
            for jj in range(2):
                j = (u & 1) * 2 + jj
                for s in range(4):
                    f = self.nextfb()
                    self.D(('a', f), aK + s, sl * 16384 + j * 1024, [((reg, j), c)], bar=b)
                    for q in range(2):
                        self.M(Sr(j, q), ('a', f), ('v', QF + (q * 4 + s) * 4), NEGM + 4 * q if s == 0 else Sr(j, q))
                for q in range(2):
                    softmax(Sr(j, q), Pr(u, q) + 2 * jj)
        def B(u):
            sl, reg, c, b = st['v']; uu = u & 1; i = u >> 1
            z = u == 0
            p8 = P8F + 4 * uu
            self.D(('a', p8), aL16, P8R - X8R + (i & 1) * 2048 + uu * 1024, [(('P8', i & 1), ('P8', h, i))], bar=b)
            for t in range(8):
                f = self.nextfb()
                for a in range(2):
                    self.T(f + 2 * a, aV + t, sl * 16384 + (2 * uu + a) * 1024, [((reg, 2 * uu + a), c)], b)
                for q in range(2):
                    d = OACC + (q * 8 + t) * 4
                    self.M(d, ('a', f), ('v', Pr(u, q)), None if z else d)
                if t >= 6:
                    d = OACC + 64 + (t - 6) * 4
                    self.M(d, ('a', f), ('a', p8), None if z else d)
                if t in (1, 3):
                    q = t >> 1; d = LACC + 4 * q
                    self.M(d, ('a', ONES), ('v', Pr(u, q)), None if z else d)
                if t == 5:
                    d = LACC + 8
                    self.M(d, ('a', ONES), ('a', p8), None if z else d)
        kitem(0, b)
        A8(0); A(0); A(1)
        for i in range(8):
            b = self.bar(); b.needs.append(st['dw']); p.dep(st['dw'], b, 4)
            vitem(i, b)
            if i < 7: kitem(i + 1, b)
            B(2 * i)
            if i < 7: A8(i + 1); A(2 * i + 2)
            B(2 * i + 1)
            if i < 7: A(2 * i + 3)
        of = self.opt.get('ostflags', '')
        for q in range(3):
            self.V(f"v_rcp_f32 v{RCP+q}, v{LACC+4*q}", R('v', LACC + 4 * q), R('v', RCP + q), kind='E')
        for s in range(4):
            for q in range(2):
                r = OACC + (q * 8 + 2 * s) * 4
                self.pack(r, r, ('v', RCP + q))
                self.store(r, sOs + s, h * 36864 + q * 4096, of)
        self.pack(OACC + 64, OACC + 64, ('v', RCP + 2))
        self.store(OACC + 64, sO8, h * 36864, of)
    def w_epilogue(self):
        pf = self.opt.get('pstflags', '')
        self.pack(ACC1 + 64, ACC1 + 64, None, True)
        self.store(ACC1 + 64, sP8, 0, pf)
        for s in range(4):
            for q in range(2):
                r = ACC1 + (q * 8 + 2 * s) * 4
                self.pack(r, r, None, True)
                self.store(r, sPs + s, q * 4096, pf)
    def make_dma(self):
        p = self.p
        readers = {}
        for o in p.ops:
            for pc, c in o.lds_rd: readers.setdefault((pc, c), []).append(o)
        def firstm(o):
            return min(s.idx for s, _ in o.succs if s.kind == 'M' and o in s.needs)
        pieces = []
        for n, it in enumerate(self.items):
            for j in range(4):
                rd = readers[((it['region'], j), it['content'])]
                key = it['key'] if it['key'] is not None else (it['bar'].pin, 1, min(firstm(o) for o in rd))
                pieces.append((key, n, j, it, rd))
        pieces.sort(key=lambda x: (x[0], x[1], x[2]))
        prevrd = {}; prevL = None
        p.fence_op = None
        self.dmas = []
        for key, n, j, it, rd in pieces:
            srd, vr, sb, lit, fl = it['src'](j)
            s1 = self.S(f"s_add_u32 m0, s{sLw}, {it['base'] + j * 1024}", R('s', sLw), [('m0', 0)], nofence=True)
            s2 = self.S(f"s_add_u32 s{sD}, s{sb}, {lit}", R('s', sb), R('s', sD), nofence=True)
            L = Op('L', f"buffer_load_dwordx4 v{vr}, {rs('s', srd, 4)}, s{sD} offen {fl} lds", rd=[('m0', 0)] + R('s', sD),
                   lds_wr=[((it['region'], j), it['content'])], nofence=True)
            p.add(L); L.rd += R('v', vr)
            if prevL is not None: p.dep(prevL, L, self.opt.get('dspace', 4))
            prevL = L
            old = prevrd.get((it['region'], j))
            if old:
                if old[0].private:
                    for o in old: L.needs.append(o); p.dep(o, L, p.LAT_DS)
                else:
                    last = max(firstm(o) for o in old)
                    fb = next(b for b in self.bars if b.pin >= last)
                    p.dep(fb, L, 0)
            prevrd[(it['region'], j)] = rd
            if it['bar'] is not None:
                it['bar'].needs.append(L); p.dep(L, it['bar'], 200)
            else:
                for o in rd: o.needs.append(L); p.dep(L, o, 0)
                L.soft = key[0] - 200
            self.dmas.append(L)
    def finish(self):
        self.make_dma()
        lin = self.p.schedule()
        lin = insert_waits(lin)
        lin, nops = fix_hazards(lin)
        verify_lds(lin)
        t, res = stats(lin)
        cum = 0; rep = []
        mk = self.marks + [("end", len(res))]
        for (n0, i0), (n1, i1) in zip(mk, mk[1:]):
            rep.append(f"{n0}:{sum(res[i0:i1])}/{16*(i1-i0)}")
        print(f"; instrs {len(lin)} mfma {len(self.p.mf)} nops {nops} est cycles {t}  " + " ".join(rep), file=sys.stderr)
        return lin

def srd(reg, ptr, size):
    return f"    s_mov_b32 s{reg}, s{ptr}\n    s_mov_b32 s{reg+1}, s{ptr+1}\n    s_mov_b32 s{reg+2}, {size}\n    s_mov_b32 s{reg+3}, 0x20000\n"

def prologue(kname):
    s = f""".globl {kname}
.p2align 8
.type {kname},@function
{kname}:
    s_cmp_ge_u32 s2, 256
    s_cbranch_scc1 L_{kname}_exit
    s_load_dwordx16 s[64:79], s[0:1], 0
    v_lshrrev_b32 v1, 6, v0
    v_and_b32 v0, 63, v0
    v_readfirstlane_b32 s{sW}, v1
    s_and_b32 s3, s2, 7
    s_lshr_b32 s4, s2, 3
    s_and_b32 s5, s3, 1
    s_lshl_b32 s5, s5, 3
    s_and_b32 s6, s4, 7
    s_add_u32 s{sB}, s5, s6
    s_lshr_b32 s{sHG}, s3, 1
    s_lshr_b32 s{sJ}, s4, 3
    s_lshl_b32 s5, s{sHG}, 3
    s_lshl_b32 s6, s{sJ}, 1
    s_add_u32 s{sH0}, s5, s6
    s_lshl_b32 s{sLw}, s{sW}, 12
    s_lshl_b32 s5, s{sB}, 5
    s_add_u32 s7, s5, s{sH0}
    s_lshl_b32 s{sKV}, s7, 17
    s_lshl_b32 s{sWQb}, s{sH0}, 8
    s_mul_i32 s{sXb}, s{sB}, 147456
    s_mul_i32 s6, s{sW}, 32512
    s_sub_u32 s6, 131072, s6
    s_add_u32 s{sX8}, s{sXb}, s6
    s_mov_b32 s{sC}, {CSCALE:#x}
    s_mul_i32 s7, s7, 36864
    s_lshl_b32 s6, s{sW}, 13
    s_add_u32 s6, s6, s7
"""
    for i in range(4):
        s += f"    s_xor_b32 s3, s{sW}, {i}\n    s_lshl_b32 s{80+i}, s3, 10\n    s_add_u32 s{sOs+i}, s6, s{80+i}\n"
    s += f"""    s_add_u32 s7, s7, 32768
    s_add_u32 s{sO8}, s7, s83
    s_lshl_b32 s3, s{sHG}, 20
    s_lshl_b32 s4, s{sJ}, 8
    s_add_u32 s{sWOb}, s3, s4
    s_lshl_b32 s3, s{sHG}, 3
    s_add_u32 s3, s3, s5
    s_mul_i32 s3, s3, 36864
    s_lshl_b32 s4, s{sW}, 13
    s_add_u32 s{sOl}, s3, s4
    s_mul_i32 s4, s{sW}, 73728
    s_add_u32 s4, s4, 32768
    s_add_u32 s{sOl8}, s3, s4
    s_lshl_b32 s3, s{sB}, 4
    s_lshl_b32 s4, s{sJ}, 2
    s_add_u32 s3, s3, s4
    s_add_u32 s3, s3, s{sHG}
    s_mul_i32 s3, s3, 36864
    s_add_u32 s3, s3, {WS_PART}
    s_lshl_b32 s4, s{sW}, 13
    s_add_u32 s4, s4, s3
"""
    for i in range(4):
        s += f"    s_add_u32 s{sPs+i}, s4, s{80+i}\n"
    s += f"""    s_add_u32 s3, s3, 32768
    s_add_u32 s{sP8}, s3, s80
    v_and_b32 v1, 15, v0
    v_lshrrev_b32 v2, 4, v0
    v_lshlrev_b32 v{vL16}, 4, v0
    s_lshl_b32 s3, s{sW}, 2
    v_add_u32 v3, s3, v2                      ; 4w+i
    v_xor_b32 v{TMP}, v1, v3
    v_lshlrev_b32 v{TMP}, 4, v{TMP}
    v_lshl_add_u32 v{TMP+1}, v2, 8, s{sLw}      ; w*4096 + i*256
    v_add_u32 v{vK}, v{TMP}, v{TMP+1}
    v_and_b32 v{TMP}, 7, v3
    v_lshlrev_b32 v{TMP}, 1, v{TMP}
    v_xor_b32 v{TMP}, v1, v{TMP}
    v_lshlrev_b32 v{TMP}, 4, v{TMP}
    v_add_u32 v{vV}, v{TMP}, v{TMP+1}
    v_lshl_add_u32 v{vWO}, v3, 10, v{TMP}
    s_lshl_b32 s3, s{sW}, 4
    v_add_u32 v3, s3, v2
    v_lshl_add_u32 v{vWQ}, v3, 13, v{TMP}
    s_lshl_b32 s3, s{sW}, 15
"""
    for j in range(4):
        s += f"""    v_add_u32 v3, {4*j}, v2
    v_xor_b32 v{TMP}, v1, v3
    v_lshlrev_b32 v{TMP}, 4, v{TMP}
    v_lshl_add_u32 v{TMP}, v3, 10, v{TMP}
    v_add_u32 v{TMP}, s3, v{TMP}
    v_subrev_u32 v{vX+j}, {1024*j}, v{TMP}
"""
    s += "    s_waitcnt lgkmcnt(0)\n"
    s += srd(SX, 64, 2359296) + srd(SK, 66, 67108864) + srd(SV, 68, 67108864) + srd(SWQ, 70, 4194304) + srd(SWO, 72, 4194304) + srd(SWS, 78, 0x2000000)
    return s

def prologue2():
    s = f"""    ; x fragment read addresses
    v_lshlrev_b32 v3, 1, v2
"""
    for k in range(4):
        hs, u = k >> 1, k & 1
        s += f"""    v_add_u32 v{TMP}, {8*hs+u}, v3
    v_xor_b32 v{TMP}, v{TMP}, v1
    v_lshlrev_b32 v{TMP}, 4, v{TMP}
    v_lshl_add_u32 v{TMP}, v1, 8, v{TMP}
    v_add_u32 v{aX8+k}, {X8R}, v{TMP}
    v_add_u32 v{aXo+k}, s{sLw}, v{TMP}
    v_add_u32 v{aXo+4+k}, {VR}, v{aXo+k}
"""
    s += f"""    ; K read addresses
    v_and_b32 v{TMP}, 1, v2
    v_lshlrev_b32 v{TMP}, 1, v{TMP}
    v_lshrrev_b32 v{TMP+1}, 1, v2
    v_or_b32 v{TMP}, v{TMP}, v{TMP+1}           ; pi(g)
    v_lshrrev_b32 v{TMP+1}, 2, v1               ; r>>2
    v_and_b32 v{TMP+2}, 3, v1                   ; r&3
    v_lshlrev_b32 v{TMP+3}, 12, v{TMP+1}
    v_lshl_add_u32 v{TMP+3}, v{TMP+2}, 8, v{TMP+3}
"""
    for k in range(4):
        s += f"""    s_lshr_b32 s3, s{80+k}, 8
    v_add_u32 v3, s3, v{TMP}
    v_xor_b32 v3, v3, v1
    v_lshl_add_u32 v{aK+k}, v3, 4, v{TMP+3}
    v_add_u32 v{aK8+k}, s80, v{aK+k}
"""
    s += f"""    ; V / W read addresses: r' = r>>2, c = r&3
    v_and_b32 v{TMP}, 1, v2
    v_lshl_add_u32 v{TMP}, v{TMP}, 2, v{TMP+1}
    v_lshlrev_b32 v{TMP}, 1, v{TMP}             ; f
    v_lshlrev_b32 v{TMP+3}, 12, v2
    v_lshl_add_u32 v{TMP+3}, v{TMP+1}, 8, v{TMP+3}
    v_and_b32 v3, 1, v1
    v_lshl_add_u32 v{TMP+3}, v3, 3, v{TMP+3}
    v_lshrrev_b32 v{TMP+2}, 1, v{TMP+2}         ; c>>1
    s_lshl_b32 s4, s{sW}, 2
"""
    for t in range(8):
        s += f"""    s_xor_b32 s3, s4, {2*t}
    v_add_u32 v3, s3, v{TMP+2}
    v_xor_b32 v3, v3, v{TMP}
    v_lshl_add_u32 v{aVk+t}, v3, 4, v{TMP+3}
    v_add_u32 v{aV+t}, {VR}, v{aVk+t}
"""
    s += f"""    v_add_u32 v{aL16}, {X8R}, v{vL16}
    s_lshr_b32 s3, s{sW}, 1
    s_lshl_b32 s3, s3, 10
    s_and_b32 s4, s{sW}, 1
    s_lshl_b32 s4, s4, 3
    s_add_u32 s3, s3, s4
    s_add_u32 s3, s3, {P8R}
    v_add_u32 v{aP8w}, s3, v{vL16}
"""
    for k in range(4):
        s += f"    v_add_u32 v{TMP+4+k}, s{80+k}, v{aL16}\n"
    s += f"""    v_and_b32 v3, 3, v0
    v_cmp_eq_u32 vcc, 0, v3
    v_mov_b32 v3, 0x3f803f80
    v_mov_b32 v{NEGM}, 0
    v_cndmask_b32 v3, v{NEGM}, v3, vcc
"""
    for k in range(1, 12): s += f"    v_mov_b32 v{NEGM+k}, 0\n"
    for k in range(4): s += f"    v_accvgpr_write_b32 a{ONES+k}, v3\n"
    return s

def descriptor(kname, nv, acc):
    return f""".amdhsa_kernel {kname}
  .amdhsa_next_free_vgpr {nv}
  .amdhsa_next_free_sgpr 102
  .amdhsa_accum_offset {acc}
  .amdhsa_group_segment_fixed_size 0
  .amdhsa_kernarg_size 64
  .amdhsa_user_sgpr_count 2
  .amdhsa_user_sgpr_kernarg_segment_ptr 1
  .amdhsa_system_sgpr_workgroup_id_x 1
.end_amdhsa_kernel
"""

def emit(kname, lin, opt):
    st = opt.get('stamps') == kname[:3]
    n = [0]
    def stamp():
        k = n[0]; n[0] += 1
        a = 88 + 4 * (k & 1); b = 88 + 4 * ((k + 1) & 1)
        t = f"    s_memrealtime s[{a}:{a+1}]\n    s_memtime s[{a+2}:{a+3}]\n"
        if k > 0: t += f"    v_writelane_b32 v242, s{b}, {k-1}\n    v_writelane_b32 v243, s{b+2}, {k-1}\n"
        return t
    s = prologue(kname)
    if st: s = s.replace("    s_load_dwordx16", stamp() + "    s_load_dwordx16")
    done2 = False
    for o in lin:
        if not done2 and o.kind not in ('L', 'S', 'G', 'N'):
            s += prologue2(); done2 = True
        s += (o.text if o.kind == 'X' else "    " + o.text) + "\n"
        if st and o.kind == 'B': s += stamp()
    if st:
        s += stamp() + "    s_waitcnt vmcnt(0) lgkmcnt(0)\n" + stamp() + "    s_waitcnt lgkmcnt(0)\n" + stamp()
        s += f"""    s_lshl_b32 s3, s2, 2
    s_add_u32 s3, s3, s{sW}
    s_lshl_b32 s3, s3, 8
    s_add_u32 s3, s3, 0x3000000
    s_mov_b32 s{SWS+2}, 0x4000000
    v_lshrrev_b32 v1, 2, v{vL16}
    s_mov_b64 exec, 0xffffffff
    buffer_store_dword v242, v1, s[{SWS}:{SWS+3}], s3 offen
    buffer_store_dword v243, v1, s[{SWS}:{SWS+3}], s3 offen offset:128
"""
        print("; stamps", n[0] - 1, file=sys.stderr)
    s += f"L_{kname}_exit:\n    s_endpgm\n"
    return s

def reduce_kernel(kname, opt={}):
    s = f""".globl {kname}
.p2align 8
.type {kname},@function
{kname}:
    s_cmp_ge_u32 s2, 576
    s_cbranch_scc1 L_{kname}_exit
    s_load_dwordx2 s[4:5], s[0:1], 40
    s_load_dwordx2 s[6:7], s[0:1], 56
    v_lshrrev_b32 v1, 6, v0
    v_and_b32 v0, 63, v0
    v_readfirstlane_b32 s16, v1               ; s = wave
    s_mul_hi_u32 s17, s2, 0x1c71c71d          ; bj = id / 9
    s_mul_i32 s18, s17, 9
    s_sub_u32 s18, s2, s18                    ; qt
    s_mul_i32 s19, s17, 147456
    s_lshl_b32 s20, s18, 12
    s_add_u32 s19, s19, s20
    s_lshl_b32 s20, s16, 10
    s_add_u32 s19, s19, s20
    s_add_u32 s19, s19, {WS_PART}
    v_lshlrev_b32 v1, 4, v0
    s_waitcnt lgkmcnt(0)
""" + srd(8, 6, 0x2000000) + srd(12, 4, 2359296)
    for k in range(4):
        s += f"    buffer_load_dwordx4 v[{4+4*k}:{7+4*k}], v1, s[8:11], s19 offen\n    s_add_u32 s19, s19, 36864\n"
    s += """    ; out offset: (b*144 + qt*16 + r)*1024 + j*256 + s*64 + pi(g)*16
    s_lshr_b32 s20, s17, 2
    s_mul_i32 s20, s20, 147456
    s_lshl_b32 s21, s18, 14
    s_add_u32 s20, s20, s21
    s_and_b32 s21, s17, 3
    s_lshl_b32 s21, s21, 8
    s_add_u32 s20, s20, s21
    s_lshl_b32 s21, s16, 6
    s_add_u32 s20, s20, s21
    v_and_b32 v2, 15, v0
    v_lshlrev_b32 v2, 10, v2
    v_and_b32 v3, 16, v0
    v_lshl_add_u32 v2, v3, 1, v2
    v_lshrrev_b32 v3, 5, v0
    v_lshl_add_u32 v2, v3, 4, v2
    s_waitcnt vmcnt(0)
"""
    for i in range(4):
        s += f"    v_lshlrev_b32 v20, 16, v{4+i}\n    v_and_b32 v21, 0xffff0000, v{4+i}\n"
        for k in range(1, 4):
            s += f"    v_lshlrev_b32 v22, 16, v{4+4*k+i}\n    v_and_b32 v23, 0xffff0000, v{4+4*k+i}\n    v_add_f32 v20, v20, v22\n    v_add_f32 v21, v21, v23\n"
        s += f"    v_cvt_pk_bf16_f32 v{24+i}, v20, v21\n"
    s += f"    buffer_store_dwordx4 v[24:27], v2, s[12:15], s20 offen\n"
    if opt.get('dbgwg') is not None:
        s = s.replace("    s_load_dwordx2 s[4:5], s[0:1], 40", "    s_memrealtime s[24:25]\n    s_load_dwordx2 s[4:5], s[0:1], 40")
        s += f"""    s_cmp_lg_u32 s2, 0
    s_cbranch_scc1 L_{kname}_exit
    s_cmp_lg_u32 s16, 0
    s_cbranch_scc1 L_{kname}_exit
    s_waitcnt vmcnt(0)
    s_memrealtime s[26:27]
    s_load_dwordx2 s[4:5], s[0:1], 48
    s_mov_b32 s10, 0x4000000
    s_mov_b32 s3, {0x3000000 + opt['dbgwg'] * 1024}
    v_lshlrev_b32 v1, 2, v0
    s_mov_b64 exec, 0xffffffff
    buffer_load_dword v2, v1, s[8:11], s3 offen
    s_waitcnt vmcnt(0) lgkmcnt(0)
    v_writelane_b32 v2, s24, 30
    v_writelane_b32 v2, s26, 31
    s_nop 1
    v_readlane_b32 s3, v2, 0
    s_nop 3
    v_subrev_u32 v2, s3, v2
    v_lshrrev_b32 v1, 1, v1
    global_store_short v1, v2, s[4:5]
"""
    s += f"L_{kname}_exit:\n    s_endpgm\n"
    return s

def build(opt):
    g = Gen(opt)
    for h in range(2):
        g.proj('Q%d' % h); dw = g.q_epilogue(h); g.attn(h, dw)
    k1 = emit('att_kernel', g.finish(), opt)
    g = Gen(dict(opt, cyc=[0, 1, 2, 3]))
    g.proj('W0'); g.proj('W1', first=False); g.w_epilogue()
    k2 = emit('prj_kernel', g.finish(), opt)
    k3 = reduce_kernel('red_kernel', opt)
    s = "; fused MHA block: projection+attention, output projection partials, reduction\n"
    s += "; @launch kernel=att_kernel grid=(256,1,1) block=(256,1,1) lds=163840\n"
    s += "; @launch kernel=prj_kernel grid=(256,1,1) block=(256,1,1) lds=163840\n"
    s += "; @launch kernel=red_kernel grid=(576,1,1) block=(256,1,1) lds=0\n"
    s += '.amdgcn_target "amdgcn-amd-amdhsa--gfx950"\n.text\n' + k1 + k2 + k3
    s += '.section .rodata,"a"\n.p2align 6\n' + descriptor('att_kernel', 512, 256) + ".p2align 6\n" + descriptor('prj_kernel', 512, 256) + ".p2align 6\n" + descriptor('red_kernel', 32, 32)
    return s

if __name__ == "__main__":
    opt = {}
    out = sys.argv[1]
    for a in sys.argv[2:]:
        k, v = a.split("=")
        opt[k] = int(v) if v.lstrip('-').isdigit() else v.replace('+', ' ')
    open(out, "w").write(build(opt))
```

```python
import re

def R(f, a, n=1):
    return [(f, a + i) for i in range(n)]
def rs(f, a, n=1):
    return f"{f}{a}" if n == 1 else f"{f}[{a}:{a+n-1}]"

ASYNC_LGKM = ('DS', 'DW')
ASYNC_VM = ('L', 'G', 'ST')
VALU = ('E', 'V', 'P', 'C')

class Op:
    n = 0
    def __init__(self, kind, text, rd=(), wr=(), **kw):
        self.kind, self.text, self.rd, self.wr = kind, text, list(rd), list(wr)
        self.preds = []
        self.succs = []
        self.needs = []
        self.est = kw.get('est', -1)
        self.pin = kw.get('pin')
        self.lst = None
        self.gap = None
        self.idx = None
        self.tag = kw.get('tag')
        self.lds_rd = kw.get('lds_rd', [])
        self.lds_wr = kw.get('lds_wr', [])
        self.private = kw.get('private', False)
        self.nofence = kw.get('nofence', False)
        self.soft = kw.get('soft')
        self.cost = kw.get('cost')
        self.firm = kw.get('firm', False)
        Op.n += 1
        self.seq = Op.n

class Prog:
    LAT_DS = 6
    LAT_G = 40
    WIN = 3
    ALT = 1
    TTW = 2
    VSP = 0.5
    DSP = 1.0
    OVF = 1
    VMW = 3
    ESP = 1.5
    LDSCAP = 3
    def __init__(self):
        self.ops = []
        self.mf = []
        self.lastw = {}
        self.readers = {}
        self.fence_op = None
    def nm(self):
        return len(self.mf)
    def dep(self, a, b, dist):
        if a is b: return
        b.preds.append((a, dist)); a.succs.append((b, dist))
    def _dist(self, a, b, raw):
        if a.kind == 'M' and b.kind == 'M': return 1
        if raw:
            if a.kind == 'DS': return self.LAT_DS
            if a.kind == 'G': return self.LAT_G
            if a.kind == 'M': return 4
            if b.kind == 'M': return 2
            if a.kind == 'E': return 1
            if b.kind == 'P': return 1
            if a.kind == 'S' and b.kind == 'L': return 1
            return 0
        if a.kind == 'M':
            return 0 if b.kind in ('DS', 'G') else 2
        if b.kind == 'M': return 1
        if a.kind in ('ST', 'L', 'G'): return 1
        return 0
    def add(self, op):
        for r in op.rd:
            w = self.lastw.get(r)
            if w is not None:
                self.dep(w, op, self._dist(w, op, True))
                if w.kind in ('DS', 'G') and w not in op.needs: op.needs.append(w)
        for r in op.wr:
            w = self.lastw.get(r)
            if w is not None:
                d = self._dist(w, op, False)
                if w.kind == 'M' and op.kind != 'M': d = 4
                self.dep(w, op, d)
                if w.kind in ('DS', 'G') and w.kind != op.kind and w not in op.needs: op.needs.append(w)
            for q in self.readers.get(r, ()):
                self.dep(q, op, self._dist(q, op, False))
        for r in op.rd:
            self.readers.setdefault(r, []).append(op)
        for r in op.wr:
            self.lastw[r] = op
            self.readers[r] = []
        if op.kind == 'M':
            op.idx = len(self.mf); self.mf.append(op)
        if self.fence_op is not None and not op.nofence and op.kind != 'M':
            self.dep(self.fence_op, op, 0)
        self.ops.append(op)
        return op
    def fence(self, text, kind='X'):
        f = Op(kind, text, pin=self.nm() - 1)
        for o in self.ops:
            if not o.nofence and o.kind != 'M': self.dep(o, f, 0)
        self.ops.append(f)
        self.fence_op = f
        return f

    def schedule(self):
        N = len(self.mf)
        BIG = N + 10
        indeg = {o: len(o.preds) for o in self.ops}
        topo = [o for o in self.ops if indeg[o] == 0]
        i = 0
        while i < len(topo):
            for s, _ in topo[i].succs:
                indeg[s] -= 1
                if indeg[s] == 0: topo.append(s)
            i += 1
        assert len(topo) == len(self.ops), "dependency cycle"
        hard = {}
        for o in reversed(topo):
            if o.kind == 'M':
                o.lst = o.due = o.idx; hard[o] = o.idx - 1; continue
            l = BIG; h = N - 1; du = BIG
            for s, d in o.succs:
                l = min(l, s.lst - d); h = min(h, hard[s]); du = min(du, s.due - d)
            if o.pin is not None:
                assert o.pin <= h, ("pinned op too late", o.text, o.pin, h)
                l = o.pin; h = o.pin; du = o.pin
            if o.soft is not None:
                l = min(l, o.soft)
                if o.firm: du = min(du, o.soft)
            o.lst = l; hard[o] = h; o.due = du
        es = sorted([o for o in self.ops if o.kind == 'E'], key=lambda o: (-o.lst, -o.seq))
        for x, y in zip(es, es[1:]):
            y.lst = min(y.lst, x.lst - self.ESP)
        es.sort(key=lambda o: (-o.due, -o.seq))
        for x, y in zip(es, es[1:]):
            y.due = min(y.due, x.due - self.ESP)
        vs = sorted([o for o in self.ops if o.kind in ('V', 'P')], key=lambda o: (-o.due, -o.seq))
        for x, y in zip(vs, vs[1:]):
            y.due = min(y.due, x.due - self.VSP); y.lst = min(y.lst, y.due)
        ds = sorted([o for o in self.ops if o.kind == 'DS'], key=lambda o: (-o.due, -o.seq))
        for x, y in zip(ds, ds[1:]):
            y.due = min(y.due, x.due - self.DSP); y.lst = min(y.lst, y.due)
        for o in self.ops:
            if o.kind == 'DS' and not o.private and self.WIN is not None:
                if o.soft is None: o.est = max(o.est, int(o.due) - self.WIN)
        seen = set(); waitgap = set()
        for m in self.mf:
            nw = [w for w in m.needs if w not in seen]
            if nw: waitgap.add(m.idx - 1); seen.update(nw)
        fill = [o for o in self.ops if o.kind != 'M']
        byhard = {}
        for o in fill: byhard.setdefault(hard[o], []).append(o)
        npl = {o: sum(1 for p, _ in o.preds if p.kind != 'M') for o in fill}
        ready = set(o for o in fill if npl[o] == 0)
        def est(o):
            e = o.est
            for p, d in o.preds:
                e = max(e, (p.idx if p.kind == 'M' else p.gap) + d)
            if o.pin is not None: e = max(e, o.pin)
            return e
        def hest(o):
            return max([p.idx for p, _ in o.preds if p.kind == 'M'] + [-1])
        estc = {o: est(o) for o in ready}
        gaps = {g: [] for g in range(-1, N)}
        def place(o, g):
            assert hest(o) <= g, ("forced before its MFMA producer", o.text, g, hest(o))
            o.gap = g; gaps[g].append(o); ready.discard(o)
            for s, _ in o.succs:
                if s.kind != 'M':
                    npl[s] -= 1
                    if npl[s] == 0:
                        ready.add(s); estc[s] = est(s)
        def force(o, g):
            if o.gap is not None: return
            for p, _ in sorted(o.preds, key=lambda x: x[0].seq):
                if p.kind != 'M' and p.gap is None: force(p, g)
            place(o, g)
        ldsw = lambda o: (2 if 'b128' in o.text else 1) if o.kind in ASYNC_LGKM else 0
        cost = lambda o: o.cost if o.cost is not None else (2 if o.kind in ('E', 'L', 'G', 'ST') else (0 if o.kind == 'X' else 1))
        for g in range(-1, N):
            if g == -1:
                while True:
                    c = sorted([o for o in ready if estc[o] <= -1 or (o.est <= -1 and hest(o) <= -1 and o.kind in ('L', 'S', 'G') and o.pin is None)], key=lambda o: (o.lst, o.seq))
                    c = [o for o in c if o.kind in ('L', 'S') and o.nofence]
                    if not c: break
                    place(c[0], g)
            for o in sorted(byhard.get(g, []), key=lambda o: o.seq): force(o, g)
            if g == -1: continue
            scal = lambda o: o.kind in ('S', 'B')
            cap = 2 - sum(cost(o) for o in gaps[g] if not scal(o))
            ns = sum((2 if o.kind == 'B' else 1) for o in gaps[g] if scal(o)) + (1 if g in waitgap else 0)
            if ns > 1: cap -= ns - 1
            extra = 0
            while True:
                c = sorted([o for o in ready if estc[o] <= g and o.pin is None], key=lambda o: (o.lst, o.seq))
                hasv = any(o.kind in VALU for o in gaps[g])
                c = [o for o in c if o.kind in VALU or scal(o) or not (hasv and any(p.gap == g and p.kind in VALU for p, _ in o.preds))]
                ldsu = sum(ldsw(o) for o in gaps[g])
                cs = [o for o in c if scal(o)]
                cm = [o for o in c if o.kind in ASYNC_VM]
                ce = [o for o in c if cost(o) >= 2 and o.kind in VALU]
                cd = [o for o in c if ldsw(o)]
                cv = [o for o in c if o.kind in VALU and cost(o) == 1]
                pick = None
                if cs and (ns < 1 or (cap >= 1 and cs[0].lst <= g and estc[cs[0]] + 2 <= g)): pick = cs[0]
                elif cap == 2 and cm and cm[0].lst <= g + self.VMW and not any(o.kind in ASYNC_VM for o in gaps[g - 1]): pick = cm[0]
                elif cap == 2:
                    dd = cd and cd[0].due <= g; de = ce and ce[0].due <= g; dv = cv and min(o.due for o in cv) <= g
                    pair = (cd and cv) or len(cv) >= 2 or (len(cd) >= 2 and cd[1].lst <= g + self.TTW)
                    if de and not (dd and cd[0].due < ce[0].due): pick = ce[0]
                    elif dd: pick = cd[0]
                    elif dv: pick = min(cv, key=lambda o: (o.due, o.seq))
                    elif ce and (ce[0].lst <= g or not pair): pick = ce[0]
                    elif cd: pick = cd[0]
                    elif cv: pick = cv[0]
                    elif cm: pick = cm[0]
                elif cap == 1:
                    fit = [o for o in cd if ldsu + ldsw(o) <= self.LDSCAP]
                    dvs = [o for o in cv if o.due <= g]
                    if ldsu == 0 and cd: pick = cd[0]
                    elif fit and fit[0].due <= g and not (dvs and min(o.due for o in dvs) <= fit[0].due): pick = fit[0]
                    elif dvs: pick = min(dvs, key=lambda o: (o.due, o.seq))
                    elif cv: pick = cv[0]
                    elif fit and fit[0].lst <= g + self.TTW: pick = fit[0]
                if pick is None and extra < 1:
                    late = [o for o in cd + cv + ce if o.due + self.OVF <= g]
                    if late: pick = min(late, key=lambda o: (o.due, o.seq)); extra += 1
                if pick is None: break
                if scal(pick):
                    if ns >= 1: cap -= 1
                    ns += 1
                else: cap -= cost(pick)
                place(pick, g)
        assert all(o.gap is not None for o in fill)
        out = []
        cls = lambda o: 0 if o.kind in ('S', 'B', 'X') else (2 if o.kind in VALU else 1)
        for g in range(-1, N):
            if g >= 0: out.append(self.mf[g])
            l = gaps[g]
            pos = {o: i for i, o in enumerate(l)}
            done = set(); rem = list(l)
            big = len(l) > 4
            while rem:
                c = [o for o in rem if all((p not in pos) or (p in done) for p, _ in o.preds)]
                o = min(c, key=(lambda o: pos[o]) if big else (lambda o: (cls(o), pos[o])))
                out.append(o); done.add(o); rem.remove(o)
        self.gaps = gaps
        return out

def insert_waits(lin):
    pos = {o: i for i, o in enumerate(lin)}
    want = {}
    lastm = None
    for i, o in enumerate(lin):
        if o.needs:
            at = i
            if o.kind == 'M' and lastm is not None and all(pos[w] < lastm for w in o.needs):
                at = lastm + 1
            want.setdefault(at, []).extend(o.needs)
        if o.kind == 'M': lastm = i
    out = []; lq = []; vq = []
    for i, o in enumerate(lin):
        if i in want:
            ln = vn = None
            for w in want[i]:
                assert pos[w] < i, ("need before issue", w.text, o.text)
                if w in lq:
                    k = len(lq) - 1 - lq.index(w); ln = k if ln is None else min(ln, k)
                if w in vq:
                    k = len(vq) - 1 - vq.index(w); vn = k if vn is None else min(vn, k)
            t = []
            if vn is not None:
                vn = min(vn, 63); t.append(f"vmcnt({vn})"); done_v = vq[:len(vq) - vn]; vq = vq[len(vq) - vn:]
            else: done_v = []
            if ln is not None:
                ln = min(ln, 15); t.append(f"lgkmcnt({ln})"); done_l = lq[:len(lq) - ln]; lq = lq[len(lq) - ln:]
            else: done_l = []
            if t:
                w = Op('W', "s_waitcnt " + " ".join(t)); w.done = done_v + done_l
                out.append(w)
        out.append(o)
        if o.kind in ASYNC_LGKM: lq.append(o)
        if o.kind in ASYNC_VM: vq.append(o)
    return out

def fix_hazards(lin):
    out = []
    def states(o):
        if o.kind == 'X': return 0
        m = re.match(r"s_nop (\d+)", o.text)
        return int(m.group(1)) + 1 if m else 1
    nops = 0
    for o in lin:
        need = 0; dist = 0
        rd, wr = set(o.rd), set(o.wr)
        for p in reversed(out):
            if dist >= 9: break
            pw, pr = set(p.wr), set(p.rd)
            req = 0
            if p.kind == 'M':
                if o.kind == 'M':
                    if pw & set(o.ab): req = 8
                    elif pw & set(o.c) and set(o.c) != pw: req = 6
                elif pw & (rd | wr): req = 8
                elif o.kind in VALU and set(p.c) & wr: req = 3
            elif p.kind in VALU:
                if o.kind == 'M' and pw & rd: req = 2
                if o.kind == 'P' and pw & rd: req = 2
                if p.kind == 'E' and o.kind != 'E' and pw & rd: req = max(req, 1)
                sw = {r for r in pw if r[0] in ('s', 'vcc')}
                if sw & rd:
                    req = max(req, 5 if o.kind in ASYNC_VM else 2)
                if 'readfirstlane' in o.text and pw & rd: req = max(req, 1)
            elif p.kind == 'ST' and pr & wr: req = 2
            elif p.kind == 'S' and ('m0', 0) in pw and o.kind == 'L': req = 1
            need = max(need, req - dist)
            dist += states(p)
        if need > 0:
            out.append(Op('N', f"s_nop {need-1}")); nops += need
        out.append(o)
    return out, nops

def verify_lds(lin):
    done_at = {}; bars = []
    for i, o in enumerate(lin):
        if o.kind == 'W':
            for w in o.done: done_at[w] = i
        if o.kind == 'B': bars.append(i)
    def ok(a, i, private):
        d = done_at.get(a)
        if d is None or d > i: return False
        return private or any(d < b < i for b in bars)
    lastw = {}; rds = {}
    for i, o in enumerate(lin):
        for p, want in o.lds_rd:
            w = lastw.get(p)
            assert w is not None, ("read of unwritten LDS", p, o.text)
            assert w[1] == want, ("wrong content", p, want, w[1], o.text)
            assert ok(w[0], i, o.private), ("RAW not covered", p, want, o.text)
            rds.setdefault(p, []).append(o)
        for p, what in o.lds_wr:
            for r in rds.get(p, []):
                assert ok(r, i, r.private), ("WAR not covered", p, what, r.text, o.text)
            rds[p] = []
            lastw[p] = (o, what)

def stats(lin):
    t = 0; prev = None; gapstart = None; res = []
    for o in lin:
        if o.kind == 'X': continue
        if o.kind == 'M':
            if gapstart is not None:
                t = max(t, gapstart + 16)
                res.append(t - gapstart)
            gapstart = t; t += 4
        elif o.kind in ('S', 'W', 'B', 'N'):
            m = re.match(r"s_nop (\d+)", o.text)
            t += 4 * (1 + o.text.count("\n    s_")) + (int(m.group(1)) if m else 0) + (12 if o.kind == 'B' else 0)
        else:
            if gapstart is not None: t = max(t, gapstart + 8)
            if o.kind not in VALU and prev is not None and prev.kind in VALU: t += 8
            if o.kind in ASYNC_LGKM and prev is not None and prev.kind in ASYNC_LGKM: t += 3
            t += 8 if o.kind in ('E', 'L', 'G', 'ST', 'C') else 4
        prev = o
    return t, res
```

```python
import sys, math, struct
from sched import *

KNAME = "standalone__mha_block_cached__near_ridge_kernel"
f2u = lambda x: struct.unpack("<I", struct.pack("<f", x))[0]
ACC1, OACC, NEGM, QF = 4, 76, 160, 172
aK, aK8, aV, aVk, aX8 = 204, 208, 212, 220, 228
aL16, aP8w, vK, vV, vWQ, vWO, RCP, vL16 = 232, 233, 234, 235, 236, 237, 238, 241
vDUM, vIR, vT1 = 150, 151, 152
STA, STB = 148, 149
ONEV, vFW, vOUT = 0, 242, 243
TMP = 244
vL8, vFO, vINI, vF = 252, 253, 254, 255
aCK, vPF, vFP = 1, 2, 3
vX, aXo = OACC, OACC + 4
XF, FB, NFB, X8B, P8F, QF8, ONES, SELX, SELY, LACC = 0, 128, 12, 176, 192, 200, 216, 220, 224, 228
SX, SK, SV, SWQ, SWO, SWS, SOUT, SDBG = 8, 12, 16, 20, 24, 28, 32, 84
sW, sB, sH0, sLw, sKV, sX8, sC, sD, sT, sHG, sJ, sFl = 36, 37, 38, 39, 40, 41, 42, 43, 44, 45, 46, 47
sOs, sXn, sWQn, sWOn, sOn = 48, 52, 56, 60, 64
sMB, sMR, sM8s, sM8r, sOut, sO8ut, sThr, sLo, sCnt, sPFq, sPFo, sT2 = 68, 71, 72, 73, 74, 75, 76, 78, 79, 96, 97, 98
sXw = 80
KR, VR, X8R, MISC = 0, 65536, 131072, 147456
P8R, Q8R, CKR = MISC, MISC + 4096, MISC + 8192
WS_MB, WS_M8, WS_FL, WS_SIZE = 0x1400000, 0x1C00000, 0x1F00000, 0x2000000
OOB = 0x7f000000
CSCALE = f2u(math.log2(math.e) / math.sqrt(128.0))
L_LO, L_HI = f2u(2.0 ** -12), f2u(2.0 ** 30)

class Gen:
    def __init__(self, opt):
        self.p = p = Prog(); self.opt = opt
        p.LAT_DS = opt.get('lat', 6); p.WIN = opt.get('win', 4); p.ESP = opt.get('esp', 20) / 10
        p.LDSCAP = opt.get('ldscap', 3); p.TTW = opt.get('ttw', 2); p.LAT_G = opt.get('latg', 70)
        p.VMW = opt.get('vmw', 60); p.DSP = opt.get('dsp', 10) / 10; p.VSP = opt.get('vsp', 5) / 10; p.OVF = opt.get('ovf', 1)
        self.fb = 0; self.pieces = []; self.bars = []; self.slotseq = {'K': 0, 'V': 0}
        self.ring_rd = []; self.marks = []; self.tail = ""; self.pend = []
    def M(self, d, a, b, c, f='v'):
        o = Op('M', f"v_mfma_f32_16x16x32_bf16 {rs(f, d, 4)}, {rs(a[0], a[1], 4)}, {rs(b[0], b[1], 4)}, " + ("0" if c is None else rs(f, c, 4)),
               rd=R(*a, 4) + R(*b, 4) + ([] if c is None else R(f, c, 4)), wr=R(f, d, 4))
        o.ab = R(*a, 4) + R(*b, 4); o.c = [] if c is None else R(f, c, 4)
        return self.p.add(o)
    def D(self, dst, areg, off, lds, bar=None, **kw):
        o = Op('DS', f"ds_read_b128 {rs(dst[0], dst[1], 4)}, v{areg} offset:{off}", rd=R('v', areg), wr=R(*dst, 4), lds_rd=lds, **kw)
        self.p.add(o)
        if bar: self.p.dep(bar, o, 0); self.ring_rd.append(o)
        return o
    def T(self, dst, areg, off, lds, bar):
        o = Op('DS', f"ds_read_b64_tr_b16 {rs('a', dst, 2)}, v{areg} offset:{off}", rd=R('v', areg), wr=R('a', dst, 2), lds_rd=lds)
        self.p.add(o); self.p.dep(bar, o, 0); self.ring_rd.append(o)
        return o
    def V(self, text, rd, wr, kind='V', **kw):
        return self.p.add(Op(kind, text, rd=rd, wr=wr, **kw))
    def S(self, text, rd, wr, **kw):
        return self.p.add(Op('S', text, rd=rd, wr=wr, **kw))
    def G(self, dst, n, vreg, srd, soff, imm, flags, **kw):
        w = {1: "dword", 4: "dwordx4"}[n]
        so = f"s{soff}" if soff is not None else "0"
        return self.p.add(Op('G', f"buffer_load_{w} {rs(dst[0], dst[1], n)}, v{vreg}, {rs('s', srd, 4)}, {so} offen offset:{imm} {flags}",
                             rd=R('v', vreg) + ([] if soff is None else R('s', soff)), wr=R(*dst, n), **kw))
    def ST(self, reg, n, vreg, srd, soff, imm, flags, **kw):
        w = {1: "dword", 4: "dwordx4"}[n]
        return self.p.add(Op('ST', f"buffer_store_{w} {rs('v', reg, n)}, v{vreg}, {rs('s', srd, 4)}, s{soff} offen offset:{imm} {flags}",
                             rd=R('v', reg, n) + R('v', vreg) + R('s', soff), **kw))
    def bar(self, lead=None):
        if lead is None: lead = self.opt.get('lead', 9)
        pin = max(self.p.nm() - lead, -1)
        if self.bars: pin = max(pin, self.bars[-1].pin)
        o = Op('B', "s_barrier", pin=pin)
        self.p.add(o)
        o.drain = set(self.ring_rd); self.ring_rd = []
        for r in o.drain: o.needs.append(r); self.p.dep(r, o, self.opt.get('drain', 4))
        if self.bars: self.p.dep(self.bars[-1], o, 0)
        self.bars.append(o)
        for minpin, fn in list(self.pend):
            if pin >= minpin: self.pend.remove((minpin, fn)); fn(o)
        return o
    def nextfb(self):
        r = FB + 4 * self.fb; self.fb = (self.fb + 1) % NFB; return r
    def slot(self, part):
        s = [3, 1, 2, 0][self.slotseq[part] % 4]; self.slotseq[part] += 1; return s
    def piece(self, cells, content, ldsreg, ldsoff, src, bar, key=None, gate=None):
        self.pieces.append(dict(cells=cells, content=content, ldsreg=ldsreg, ldsoff=ldsoff, src=src, bar=bar, key=key, gate=gate))
    def item(self, part, sl, content, bar, src, key=None):
        for j in range(4):
            self.piece([(part, sl, j)], content, sLw, (KR if part == 'K' else VR) + sl * 16384 + j * 1024, src(j), bar, key)
    def poll(self, name, vreg, srd, soff, imm, want, est, after=(), lag=0):
        lat = self.p.LAT_G; self.p.LAT_G = lag
        g = self.G(('v', vF), 1, vreg, srd, soff, imm, "sc1", est=est, soft=est)
        for a in after: self.p.dep(a, g, 0)
        c = self.V(f"v_cmp_ne_u32 vcc, {want}, v{vF}\n    s_cbranch_vccnz L_spin_{name}\nL_ret_{name}:", R('v', vF), [('vcc', 0)], kind='C', cost=2,
                   soft=est + lag)
        self.p.LAT_G = lat
        self.tail += f"""L_spin_{name}:
    s_mov_b32 s{sCnt}, 0
L_spin2_{name}:
    {g.text}
    s_waitcnt vmcnt(0)
    v_cmp_ne_u32 vcc, {want}, v{vF}
    s_cbranch_vccz L_ret_{name}
    s_add_u32 s{sCnt}, s{sCnt}, 1
    s_cmp_lt_u32 s{sCnt}, 0x40000
    s_cbranch_scc0 L_ret_{name}
    s_sleep 1
    s_branch L_spin2_{name}
"""
        return c

    def proj(self, name, first=True, gate=None, own=None):
        p = self.p; isq = name[0] == 'Q'; ph = int(name[1]); opt = self.opt
        wf = opt.get('wflags', ''); xf = opt.get('xflags', '')
        self.marks.append((name, p.nm()))
        xslots = [0, 2, 0, 1]; wslots = [1, 3, 2, 0]
        start = p.nm()
        for n in range(4):
            b = self.bar()
            if name == 'Q0':
                est = -1 if n == 0 else start + (n - 1) * 72 + opt.get('xest', 30)
                for a, part in enumerate('KV'):
                    c = ('X', n, a)
                    self.item(part, xslots[n], c, None, lambda j: (SX, vX + j, sXn + n, a * 16384 + j * 1024, xf), key=(est, 0, a))
                    for k in range(4):
                        self.D(('a', XF + (a * 16 + n * 4 + k) * 4), aXo + a * 4 + k, xslots[n] * 16384,
                               [((part, xslots[n], j), c) for j in range(4)], private=True, est=est, soft=est + 8)
                if n == 0:
                    for j in range(4):
                        self.piece([('X8', blk, j) for blk in range(4)], 'X8', sLw, X8R + j * 1024, (SX, vX + j, sX8, j * 1024, xf), b, key=(-1, 0, 2))
            if not isq:
                gt = own if n == 0 else gate
                self.piece([('X8', n, j) for j in range(4)], (name, n), sXw + 3, X8R + n * 4096, (SWS, vL8, sOn + n, ph * 36864, 'sc1'), b, gate=gt)
                est = p.nm() - opt.get('gest', 110)
                for q in range(2):
                    self.S(f"s_add_u32 s{sT2}, s{sOn+n}, {ph * 36864 + q * 4096}", R('s', sOn + n), R('s', sT2), est=est - 4)
                    for s in range(4):
                        g = self.G(('a', XF + (q * 16 + n * 4 + s) * 4), 4, vL16, SWS, sT2, s * 1024, 'sc1', est=est + 3 * (4 * q + s))
                        for x in gt:
                            p.dep(x, g, 0 if x.kind == 'C' else 30)
                            if x.kind == 'ST': g.needs.append(x)
            sl = []; cs = []
            for hs, part in enumerate('KV'):
                sl.append(wslots[n] if name == 'Q0' else self.slot(part)); cs.append((name, n, hs))
                if isq: self.item(part, sl[hs], cs[hs], b, lambda j: (SWQ, vWQ, sWQn + n, (hs * 64 + 4 * j) * 8192 + ph * 256, wf))
                else: self.item(part, sl[hs], cs[hs], b, lambda j: (SWO, vWO, sWOn + n, (ph * 128 + 64 * hs + 16 * j) * 1024, wf))
            for k in range(4):
                if isq: self.D(('a', X8B + 4 * k), aX8 + k, n * 4096, [(('X8', n, j), 'X8') for j in range(4)], bar=b)
                else: self.D(('a', X8B + 4 * k), aL16, (n * 4 + k) * 1024, [(('X8', n, k), (name, n))], bar=b)
            for t in range(8):
                f = []
                for k in range(4):
                    hs, u = k >> 1, k & 1
                    f.append(self.nextfb())
                    for a in range(2):
                        self.T(f[k] + 2 * a, (aVk, aV)[hs] + t, sl[hs] * 16384 + (2 * u + a) * 1024, [(('KV'[hs], sl[hs], 2 * u + a), cs[hs])], b)
                for q in range(3 if t < 2 else 2):
                    d = ACC1 + (q * 8 + t) * 4
                    for i, k in enumerate(range(4) if q != 1 else range(3, -1, -1)):
                        bop = ('a', XF + (q * 16 + n * 4 + k) * 4) if q < 2 else ('a', X8B + 4 * k)
                        self.M(d, ('a', f[k]), bop, None if (first and n == 0 and i == 0) else d)
                if n == 3 and t & 1: self.proj_out(name, t >> 1)
    def pack(self, src, dst, scale=None, swap=False):
        if scale is not None:
            for i in range(8):
                self.V(f"v_mul_f32 v{src+i}, {scale[0]}{scale[1]}, v{src+i}", R('v', src + i) + [scale], R('v', src + i))
        for i in range(4):
            self.V(f"v_cvt_pk_bf16_f32 v{dst+i}, v{src+2*i}, v{src+2*i+1}", R('v', src + 2 * i, 2), R('v', dst + i))
        if swap:
            for i in range(2):
                self.V(f"v_permlane16_swap_b32 v{dst+i}, v{dst+2+i}", [('v', dst + i), ('v', dst + 2 + i)], [('v', dst + i), ('v', dst + 2 + i)], kind='P')
    def proj_out(self, name, s):
        if name[0] == 'Q':
            h = int(name[1])
            if s == 0:
                self.pack(ACC1 + 64, TMP, ('s', sC), True)
                self.q8w = self.p.add(Op('DW', f"ds_write_b128 v{TMP+4}, {rs('v', TMP, 4)} offset:{Q8R - X8R}", rd=R('v', TMP, 5), lds_wr=[(('Q8', 0), ('Q8', h))]))
            for q in range(2):
                self.pack(ACC1 + (q * 8 + 2 * s) * 4, QF + (q * 4 + s) * 4, ('s', sC), True)
        elif name == 'W1' and s < 3:
            if s == 0:
                self.pst = []
                self.pack(ACC1 + 64, TMP)
                self.pst.append(self.ST(TMP, 4, vL16, SWS, sM8s, 0, 'sc1'))
            for q in range(2):
                r = ACC1 + (q * 8 + 2 * s) * 4
                self.pack(r, r)
                self.pst.append(self.ST(r, 4, vL16, SWS, sMB + s, q * 1024, 'sc1'))
    def flag(self, word, stores, after=(), lag=40):
        f = self.ST(ONEV, 1, vFW, SWS, sFl, 4 * word, 'sc1')
        for s in stores: f.needs.append(s); self.p.dep(s, f, lag)
        for a in after: self.p.dep(a, f, 0)
        f.soft = -1000
        return f
    def attn(self, h):
        p = self.p; opt = self.opt
        self.marks.append(("A%d" % h, p.nm()))
        Sr = lambda j, q: ACC1 + (j * 2 + q) * 4
        S8 = ACC1 + 32; P8o = ACC1 + 60
        Pr = lambda u, q: ACC1 + 36 + ((u % 3) * 2 + q) * 4
        kv = opt.get('kvflags', 'nt')
        start = p.nm()
        b = self.bar(); b.needs.append(self.q8w); p.dep(self.q8w, b, 4)
        for s in range(4):
            self.D(('a', QF8 + 4 * s), TMP + 4 + s, Q8R - X8R, [(('Q8', 0), ('Q8', h))], bar=b)
        self.V(f"s_cmp_eq_u32 s{sThr+h}, -1\n    s_cbranch_scc1 L_max{h}\nL_maxret{h}:", R('v', QF, 32) + R('a', QF8, 16), R('v', ACC1, 36) + R('v', NEGM, 12), kind='C', cost=2)
        self.tail += maxpass(h)
        st = {}
        def kitem(i, b):
            sl = self.slot('K'); c = ('K', h, i)
            self.item('K', sl, c, b, lambda j: (SK, vK, sKV, h * 131072 + i * 16384 + j * 1024, kv))
            st['k'] = (sl, c, b)
        def vitem(i, b):
            sl = self.slot('V'); c = ('V', h, i)
            self.item('V', sl, c, b, lambda j: (SV, vV, sKV, h * 131072 + i * 16384 + j * 1024, kv))
            st['v'] = (sl, c, b)
        def softmax(src, dst):
            for i in range(4):
                self.V(f"v_exp_f32 v{src+i}, v{src+i}", R('v', src + i), R('v', src + i), kind='E')
            for i in range(2):
                self.V(f"v_cvt_pk_bf16_f32 v{dst+i}, v{src+2*i}, v{src+2*i+1}", R('v', src + 2 * i, 2), R('v', dst + i))
        def A8(i):
            sl, c, b = st['k']
            for s in range(4):
                f = self.nextfb()
                self.D(('a', f), aK8 + s, sl * 16384, [(('K', sl, j), c) for j in range(4)], bar=b)
                self.M(S8, ('a', f), ('a', QF8 + 4 * s), NEGM + 8 if s == 0 else S8)
            softmax(S8, P8o)
            st['dw'] = p.add(Op('DW', f"ds_write_b64 v{aP8w}, {rs('v', P8o, 2)} offset:{(i & 1) * 2048}", rd=R('v', P8o, 2) + R('v', aP8w),
                                lds_wr=[(('P8', i & 1), ('P8', h, i))]))
            p.dep(b, st['dw'], 0)
        def A(u):
            sl, c, b = st['k']
            for jj in range(2):
                j = (u & 1) * 2 + jj
                f = []
                for s in range(4):
                    f.append(self.nextfb())
                    self.D(('a', f[s]), aK + s, sl * 16384 + j * 1024, [(('K', sl, j), c)], bar=b)
                for q in range(2):
                    for i, s in enumerate(range(4) if q == 0 else range(3, -1, -1)):
                        self.M(Sr(j, q), ('a', f[s]), ('v', QF + (q * 4 + s) * 4), NEGM + 4 * q if i == 0 else Sr(j, q))
                    softmax(Sr(j, q), Pr(u, q) + 2 * jj)
        def B(u):
            sl, c, b = st['v']; uu = u & 1; i = u >> 1
            z = u == 0
            p8 = P8F + 4 * uu
            self.D(('a', p8), aL16, P8R - X8R + (i & 1) * 2048 + uu * 1024, [(('P8', i & 1), ('P8', h, i))], bar=b)
            for t in range(8):
                f = self.nextfb()
                for a in range(2):
                    self.T(f + 2 * a, aV + t, sl * 16384 + (2 * uu + a) * 1024, [(('V', sl, 2 * uu + a), c)], b)
                for q in range(2):
                    d = OACC + (q * 8 + t) * 4
                    self.M(d, ('a', f), ('v', Pr(u, q)), None if z else d)
                if t >= 6:
                    d = OACC + 64 + (t - 6) * 4
                    self.M(d, ('a', f), ('a', p8), None if z else d)
                if t in (1, 3):
                    q = t >> 1; d = LACC + 4 * q
                    self.M(d, ('a', ONES), ('v', Pr(u, q)), None if z else d, 'a')
                if t == 5:
                    d = LACC + 8
                    self.M(d, ('a', ONES), ('a', p8), None if z else d, 'a')
        def Blast():
            sl, c, b = st['v']
            for uu in range(2):
                self.D(('a', P8F + 4 * uu), aL16, P8R - X8R + 2048 + uu * 1024, [(('P8', 1), ('P8', h, 7))], bar=b)
            bop = lambda uu, q: ('v', Pr(14 + uu, q)) if q < 2 else ('a', P8F + 4 * uu)
            def frag(t, uu):
                f = self.nextfb()
                for a in range(2):
                    self.T(f + 2 * a, aV + t, sl * 16384 + (2 * uu + a) * 1024, [(('V', sl, 2 * uu + a), c)], b)
                return f
            acc = lambda t, q: OACC + (q * 8 + t) * 4 if q < 2 else OACC + 64 + (t - 6) * 4
            nh = opt.get('nh', 5)
            for t in range(nh):
                f = frag(t, 0)
                for q in range(2): self.M(acc(t, q), ('a', f), bop(0, q), acc(t, q))
                if t < 3: self.M(LACC + 4 * t, ('a', ONES), bop(0, t), LACC + 4 * t, 'a')
            for q in (2, 0, 1): self.M(LACC + 4 * q, ('a', ONES), bop(1, q), LACC + 4 * q, 'a')
            for t in range(8):
                us = [1] if t < nh else [0, 1]
                f = {uu: frag(t, uu) for uu in us}
                for q in range(3 if t >= 6 else 2):
                    for uu in (us if q != 1 else us[::-1]): self.M(acc(t, q), ('a', f[uu]), bop(uu, q), acc(t, q))
        kitem(0, b)
        A8(0); A(0); A(1)
        for i in range(8):
            b = self.bar(); b.needs.append(st['dw']); p.dep(st['dw'], b, 4)
            vitem(i, b)
            if i < 7: kitem(i + 1, b)
            if i == 1:
                e = p.nm()
                if h == 0: self.G(('v', vDUM), 1, vPF, SWQ, sPFq, 0, '', est=e, soft=e)
                else:
                    self.V(f"v_lshrrev_b32 v{vPF}, 3, v{vPF}", R('v', vPF), R('v', vPF))
                    self.V(f"v_and_b32 v{vT1}, 16, v{vL16}", R('v', vL16), R('v', vT1))
                    self.V(f"v_mad_u32_u24 v{vPF}, v{vT1}, 7, v{vPF}", R('v', vPF) + R('v', vT1), R('v', vPF))
                    self.G(('v', vDUM), 1, vPF, SWO, sPFo, 0, '', est=e, soft=e)
            if h == 0 and i == 2:
                e = p.nm()
                o = p.add(Op('ST', f"buffer_atomic_add v{ONEV}, v{vINI}, {rs('s', SDBG, 4)}, 0 offen sc1", rd=R('v', ONEV) + R('v', vINI), est=e, soft=e))
                p.dep(b, o, 0)
            if h == 1 and i == 0:
                c0 = self.poll('ini', vIR, SDBG, None, 0, 16, p.nm(), lag=165)
            if h == 1 and i == 3:
                self.gate0 = self.poll('o0', vFO, SWS, None, 0, 1, p.nm(), after=[c0], lag=165)
            if i == 7: Blast(); break
            B(2 * i); A8(i + 1); A(2 * i + 2); B(2 * i + 1); A(2 * i + 3)
        for q in range(3):
            self.V(f"v_accvgpr_read_b32 v{RCP+q}, a{LACC+4*q}", R('a', LACC + 4 * q), R('v', RCP + q), soft=p.nm() - 24)
            self.V(f"v_subrev_u32 v{TMP+q}, s{sLo}, v{RCP+q}", R('v', RCP + q) + R('s', sLo), R('v', TMP + q), soft=p.nm() - 24)
        self.V(f"v_max3_u32 v{TMP}, v{TMP}, v{TMP+1}, v{TMP+2}", R('v', TMP, 3), R('v', TMP), soft=p.nm() - 24)
        cw = p.add(Op('DW', f"ds_write_b32 v{aCK}, v{TMP}", rd=R('v', TMP) + R('v', aCK), lds_wr=[(('CK', 0), ('CK', h))], soft=p.nm() - 24))
        sts = []
        for q in range(3):
            self.V(f"v_rcp_f32 v{RCP+q}, v{RCP+q}", R('v', RCP + q), R('v', RCP + q), kind='E')
        for s in range(4):
            for q in range(2):
                r = OACC + (q * 8 + 2 * s) * 4
                self.pack(r, r, ('v', RCP + q))
                self.S(f"s_add_u32 s{sT}, s{sOs+s}, {h * 36864 + q * 4096}", R('s', sOs + s), R('s', sT))
                sts.append(self.ST(r, 4, vL16, SWS, sT, 0, 'sc1', soft=p.nm() + opt.get('osoft', 9) * len(sts), firm=(h == 1)))
        self.pack(OACC + 64, OACC + 64, ('v', RCP + 2))
        self.S(f"s_add_u32 s{sT}, s{sOn}, {h * 36864}", R('s', sOn), R('s', sT))
        sts.append(self.ST(OACC + 64, 4, vL8, SWS, sT, 0, 'sc1', soft=p.nm() + opt.get('osoft', 9) * 8, firm=(h == 1)))
        self.ost = sts
        def check(b):
            b.needs.append(cw); p.dep(cw, b, 4)
            self.D(('v', TMP), aL16, CKR - X8R, [(('CK', 0), ('CK', h))], bar=b, soft=b.pin)
            self.V(f"v_max3_u32 v{TMP}, v{TMP}, v{TMP+1}, v{TMP+2}", R('v', TMP, 3), R('v', TMP), soft=b.pin + 8)
            self.V(f"v_max_u32 v{TMP}, v{TMP}, v{TMP+3}", R('v', TMP, 4), R('v', TMP), soft=b.pin + 8)
            c = self.V(f"v_cmp_lt_u32 vcc, s{sThr+h}, v{TMP}\n    s_cbranch_vccnz L_fail{h}", R('v', TMP) + R('s', sThr + h), [('vcc', 0)], kind='C', cost=2, soft=b.pin + 9)
            fl = self.flag(h, sts, after=[c], lag=opt.get('flag', 40) if h else 120)
            if h == 1:
                self.gate1 = self.poll('o1', vFO, SWS, None, 4, 1, b.pin + opt.get('p1est', 110), after=[fl], lag=opt.get('p1lag', 50))
        self.pend.append((p.nm() + opt.get('ckat', 8), check))
        self.tail += f"L_fail{h}:\n" + "".join(f"    s_mov_b32 s{sThr+k}, -1\n" for k in range(h, 2)) + f"""    s_waitcnt vmcnt(0) lgkmcnt(0)
    s_nop 15
    v_mov_b32 v{vINI}, {OOB}
    s_barrier
    s_branch L_restart
"""
    def wrot(self):
        self.S(f"s_lshl_b32 s{sC}, s{sHG}, 6", R('s', sHG), R('s', sC))
        for r in list(range(aVk, aVk + 8)) + list(range(aV, aV + 8)):
            self.V(f"v_xor_b32 v{r}, s{sC}, v{r}", R('v', r) + R('s', sC), R('v', r))
    def final(self):
        p = self.p
        self.marks.append(("F", p.nm()))
        fl = self.flag(2, self.pst, lag=0); fl.est = p.nm() - 1
        p.LAT_G = 0
        c = self.poll('pp', vFP, SWS, None, 8, 1, p.nm() - 1, after=[fl])
        ld = []
        for e in range(3):
            for q in range(2):
                if e == 2 and q == 0: self.S(f"s_add_u32 s{sMR}, s{sMR}, 4096", R('s', sMR), R('s', sMR))
                ld.append(self.G(('a', FB + (e * 2 + q) * 4), 4, vL16, SWS, sMR, ((e * 2 + q) & 3) * 1024, 'sc1'))
        for e in range(3):
            ld.append(self.G(('a', FB + (6 + e) * 4), 4, vL16, SWS, sM8r, (e + 1) * 1024, 'sc1'))
        for g in ld: p.dep(c, g, 0); g.soft = -1000
        f = p.fence("; partial sums requested")
        for e in range(3):
            for q in range(3):
                r = ACC1 + (q * 8 + 6) * 4 if q < 2 else ACC1 + 64
                bop = ('a', FB + ((e * 2 + q) if q < 2 else 6 + e) * 4)
                self.M(r, ('a', SELX), bop, r); self.M(r + 4, ('a', SELY), bop, r + 4)
        for q in range(3):
            r = ACC1 + (q * 8 + 6) * 4 if q < 2 else ACC1 + 64
            self.pack(r, r, None, True)
            if q == 1: self.S(f"s_add_u32 s{sOut}, s{sOut}, 16384", R('s', sOut), R('s', sOut))
            self.ST(r, 4, vOUT, SOUT, sOut if q < 2 else sO8ut, 0, self.opt.get('outflags', ''))
    def make_dma(self):
        p = self.p
        readers = {}
        for o in p.ops:
            for pc, c in o.lds_rd: readers.setdefault((pc, c), []).append(o)
        def firstm(o):
            return min(s.idx for s, _ in o.succs if s.kind == 'M' and o in s.needs)
        prev = {}
        for n, x in enumerate(self.pieces):
            x['n'] = n
            x['rd'] = list(dict.fromkeys(o for c in x['cells'] for o in readers[(c, x['content'])]))
            if x['key'] is None: x['key'] = (x['bar'].pin, 1, min(firstm(o) for o in x['rd']))
        for x in sorted(self.pieces, key=lambda x: (x['key'], x['n'])):
            old = list(dict.fromkeys(o for c in x['cells'] if c in prev for o in readers[(c, prev[c])]))
            x['old'] = old; x['fb'] = None; av = -1
            if old:
                if old[0].private: av = max(o.est for o in old) + 8 + p.LAT_DS
                else:
                    x['fb'] = max((b for b in self.bars if b.drain & set(old)), key=lambda b: b.seq); av = x['fb'].pin
            for g in x['gate'] or (): av = max(av, g.soft + (0 if g.kind == 'C' else 40))
            x['av'] = av
            for c in x['cells']: prev[c] = x['content']
        sp = self.opt.get('dspace', 4)
        rem = sorted(self.pieces, key=lambda x: (x['key'], x['n'])); t = -1; order = []
        while rem:
            x = next((y for y in rem if not (y['gate'] and y['av'] > t)), None)
            gx = [y for y in rem if y['gate'] and (x is None or y['av'] <= max(t, x['av']))]
            if gx and (x is None or gx[0]['key'] < x['key']): x = gx[0]
            t = max(t, x['av']) + (sp if x['av'] > -1 else 0)
            order.append(x); rem.remove(x)
        prevL = None; cur = None
        p.fence_op = None
        for x in order:
            srd, vr, sb, lit, fl = x['src']
            imm = x['ldsoff'] - cur[1] if cur and cur[0] == x['ldsreg'] else -1
            if not (0 <= imm < 4096) or lit - imm < 0:
                self.S(f"s_add_u32 m0, s{x['ldsreg']}, {x['ldsoff']}", R('s', x['ldsreg']), [('m0', 0)], nofence=True)
                cur = (x['ldsreg'], x['ldsoff'], cur[2] if cur else None); imm = 0
            if cur[2] != (sb, lit - imm):
                self.S(f"s_add_u32 s{sD}, s{sb}, {lit - imm}", [], R('s', sD), nofence=True)
                cur = (cur[0], cur[1], (sb, lit - imm))
            L = Op('L', f"buffer_load_dwordx4 v{vr}, {rs('s', srd, 4)}, s{sD} offen offset:{imm} {fl} lds", rd=[('m0', 0)] + R('s', sD),
                   lds_wr=[(c, x['content']) for c in x['cells']], nofence=True)
            if order.index(x) >= self.opt.get('burst', 32): L.est = 0
            p.add(L); L.rd += R('v', vr)
            if prevL is not None: p.dep(prevL, L, sp)
            prevL = L
            if x['fb'] is not None: p.dep(x['fb'], L, 0)
            elif x['old']:
                for o in x['old']: L.needs.append(o); p.dep(o, L, p.LAT_DS)
            for g in x['gate'] or ():
                p.dep(g, L, 0 if g.kind == 'C' else 30)
                if g.kind == 'ST': L.needs.append(g)
            L.soft = x['key'][0] - 200
            if x['bar'] is not None:
                x['bar'].needs.append(L); p.dep(L, x['bar'], 0)
            else:
                for o in x['rd']: o.needs.append(L); p.dep(L, o, 0)
    def finish(self):
        assert not self.pend
        self.make_dma()
        lin = self.p.schedule()
        lin = insert_waits(lin)
        lin, nops = fix_hazards(lin)
        verify_lds(lin)
        t, res = stats(lin)
        mk = self.marks + [("end", len(res))]
        rep = [f"{n0}:{sum(res[i0:i1])}/{16*(i1-i0)}" for (n0, i0), (n1, i1) in zip(mk, mk[1:])]
        print(f"; instrs {len(lin)} mfma {len(self.p.mf)} nops {nops} est cycles {t}  " + " ".join(rep), file=sys.stderr)
        return lin

def maxpass(h):
    F, A0, MX, AD = ACC1, ACC1 + 4, ACC1 + 16, ACC1 + 20
    s = f"""L_max{h}:
    s_nop 15
    v_lshrrev_b32 v{AD+4}, 4, v{vL16}
    v_and_b32 v{AD+5}, 15, v{AD+4}
    v_lshlrev_b32 v{AD+5}, 8, v{AD+5}
    v_and_b32 v{AD+6}, 16, v{AD+4}
    v_lshl_add_u32 v{AD+5}, v{AD+6}, 1, v{AD+5}
    v_lshrrev_b32 v{AD+6}, 5, v{AD+4}
    v_lshl_add_u32 v{AD+5}, v{AD+6}, 4, v{AD+5}
"""
    for k in range(4):
        s += f"    s_lshr_b32 s{sCnt}, s{sXw+k}, 4\n    v_add_u32 v{AD+k}, s{sCnt}, v{AD+5}\n"
    for q in range(3): s += f"    v_mov_b32 v{MX+q}, 0xff800000\n"
    s += f"    s_add_u32 s3, s{sKV}, {h * 131072}\n    s_mov_b32 s{sCnt}, 0\nL_maxl{h}:\n"
    for k in range(4):
        s += f"    buffer_load_dwordx4 {rs('v', F, 4)}, v{AD+k}, {rs('s', SK, 4)}, s3 offen\n    s_waitcnt vmcnt(0)\n"
        for q in range(3):
            bop = rs('v', QF + (q * 4 + k) * 4, 4) if q < 2 else rs('a', QF8 + 4 * k, 4)
            d = rs('v', A0 + 4 * q, 4)
            s += f"    v_mfma_f32_16x16x32_bf16 {d}, {rs('v', F, 4)}, {bop}, {'0' if k == 0 else d}\n"
        s += "    s_nop 15\n"
    for q in range(3):
        a = A0 + 4 * q
        s += f"    v_max3_f32 v{MX+q}, v{MX+q}, v{a}, v{a+1}\n    v_max3_f32 v{MX+q}, v{MX+q}, v{a+2}, v{a+3}\n"
    s += f"""    s_add_u32 s3, s3, 4096
    s_add_u32 s{sCnt}, s{sCnt}, 1
    s_cmp_lt_u32 s{sCnt}, 32
    s_cbranch_scc1 L_maxl{h}
"""
    for q in range(3):
        for op in ("v_permlane16_swap_b32", "v_permlane32_swap_b32"):
            s += f"    v_mov_b32 v{F}, v{MX+q}\n    s_nop 1\n    {op} v{F}, v{MX+q}\n    s_nop 1\n    v_max_f32 v{MX+q}, v{F}, v{MX+q}\n"
        for i in range(4): s += f"    v_xor_b32 v{NEGM+4*q+i}, 0x80000000, v{MX+q}\n"
    s += f"    s_nop 7\n    s_branch L_maxret{h}\n"
    return s

def srd(reg, ptr, size):
    return f"    s_mov_b32 s{reg}, s{ptr}\n    s_mov_b32 s{reg+1}, s{ptr+1}\n    s_mov_b32 s{reg+2}, {size}\n    s_mov_b32 s{reg+3}, 0x20000\n"

def prologue(opt):
    s = f""".globl {KNAME}
.p2align 8
.type {KNAME},@function
{KNAME}:
    s_cmp_ge_u32 s2, 256
    s_cbranch_scc1 L_exit
;STAMP
    s_load_dwordx8 s[{SX}:{SX+7}], s[0:1], 0
    s_load_dwordx8 s[{SWO}:{SWO+7}], s[0:1], 32
    v_lshrrev_b32 v1, 6, v0
    v_cmp_eq_u32 vcc, 0, v0
    v_readfirstlane_b32 s{sW}, v1
    s_and_b32 s3, s2, 7
    s_lshr_b32 s4, s2, 3
    s_and_b32 s5, s3, 1
    s_lshl_b32 s5, s5, 3
    s_and_b32 s6, s4, 7
    s_add_u32 s{sB}, s5, s6
    s_lshr_b32 s{sHG}, s3, 1
    s_lshr_b32 s{sJ}, s4, 3
    s_lshl_b32 s5, s{sHG}, 3
    s_lshl_b32 s6, s{sJ}, 1
    s_add_u32 s{sH0}, s5, s6
    s_lshl_b32 s{sLw}, s{sW}, 12
    s_lshl_b32 s5, s{sB}, 5
    s_add_u32 s7, s5, s{sH0}
    s_lshl_b32 s{sKV}, s7, 17
;KVSAME
    s_lshl_b32 s3, s{sB}, 4
    v_mov_b32 v{vIR}, s3
    v_mov_b32 v2, {OOB}
    v_cndmask_b32 v{vINI}, v2, v{vIR}, vcc
    s_mov_b32 s{sThr}, {L_HI - L_LO:#x}
    s_mov_b32 s{sThr+1}, {L_HI - L_LO:#x}
    s_mov_b32 s{sLo}, {L_LO:#x}
    s_xor_b32 s7, s{sB}, s{sJ}
    s_and_b32 s7, s7, {opt.get('rot', 3)}
    s_mul_i32 s5, s{sB}, 147456
    s_lshl_b32 s6, s{sH0}, 8
"""
    for n in range(4):
        s += f"""    s_xor_b32 s3, s7, {n}
    s_lshl_b32 s4, s3, 8
    s_add_u32 s{sXn+n}, s5, s4
    s_lshl_b32 s4, s3, 20
    s_add_u32 s{sWQn+n}, s6, s4
"""
    s += f"""    s_xor_b32 s3, s7, s{sW}
    s_lshl_b32 s3, s3, 8
    s_lshl_b32 s4, s{sW}, 15
    s_sub_u32 s3, s3, s4
    s_add_u32 s3, s3, 131072
    s_add_u32 s{sX8}, s5, s3
    ; own flag line
    s_lshl_b32 s3, s{sB}, 2
    s_add_u32 s3, s3, s{sJ}
    s_lshl_b32 s3, s3, 2
    s_add_u32 s3, s3, s{sHG}
    s_lshl_b32 s3, s3, 2
    s_add_u32 s3, s3, s{sW}
    s_lshl_b32 s3, s3, 7
    s_add_u32 s{sFl}, s3, {WS_FL}
    v_mov_b32 v4, 0
    v_mov_b32 v5, 0
    v_mov_b32 v6, 0
    v_mov_b32 v7, 0
    v_and_b32 v1, 63, v0
    v_cmp_eq_u32 vcc, 0, v1
    s_nop 0
    s_waitcnt lgkmcnt(0)
    v_cndmask_b32 v{vFW}, v2, v4, vcc
""" + srd(SDBG, SWO + 4, 256) + srd(SOUT, SWO + 2, 2359296) + srd(SWS, SWO + 6, WS_SIZE) + f"""    s_mov_b32 s{SWO+2}, 4194304
    s_mov_b32 s{SWO+3}, 0x20000
""" + srd(SWQ, SX + 6, 4194304) + srd(SV, SX + 4, 67108864) + srd(SK, SX + 2, 67108864) + f"""    s_mov_b32 s{SX+2}, 2359296
    s_mov_b32 s{SX+3}, 0x20000
    buffer_store_dwordx4 v[4:7], v{vFW}, {rs('s', SWS, 4)}, s{sFl} offen sc1
L_restart:
    v_mbcnt_lo_u32_b32 v0, -1, 0
    v_mbcnt_hi_u32_b32 v0, -1, v0
    ; lane decomposition: v1 = r = l&15, v2 = g = l>>4
    v_and_b32 v1, 15, v0
    v_lshrrev_b32 v2, 4, v0
    v_lshlrev_b32 v{vL16}, 4, v0
    s_lshl_b32 s3, s{sW}, 15
"""
    for j in range(4):
        s += f"""    v_add_u32 v3, {4*j}, v2
    v_xor_b32 v{TMP}, v1, v3
    v_lshlrev_b32 v{TMP}, 4, v{TMP}
    v_lshl_add_u32 v{TMP}, v3, 10, v{TMP}
    v_add_u32 v{TMP}, s3, v{TMP}
    v_subrev_u32 v{vX+j}, {1024*j}, v{TMP}
"""
    s += f"""    s_lshl_b32 s3, s{sW}, 2
    v_add_u32 v3, s3, v2                      ; 4w+i
    v_xor_b32 v{TMP}, v1, v3
    v_lshlrev_b32 v{TMP}, 4, v{TMP}
    v_lshl_add_u32 v{TMP+1}, v2, 8, s{sLw}      ; w*4096 + i*256
    v_add_u32 v{vK}, v{TMP}, v{TMP+1}
    v_and_b32 v{TMP}, 7, v3
    v_lshlrev_b32 v{TMP}, 1, v{TMP}
    v_xor_b32 v{TMP}, v1, v{TMP}
    v_lshlrev_b32 v{TMP}, 4, v{TMP}
    v_add_u32 v{vV}, v{TMP}, v{TMP+1}
    v_lshl_add_u32 v{vWO}, v3, 10, v{TMP}
    s_lshl_b32 s3, s{sW}, 4
    v_add_u32 v3, s3, v2
    v_lshl_add_u32 v{vWQ}, v3, 13, v{TMP}
"""
    return s

def prologue2(opt):
    s = ""
    if opt.get('cpf', 1):
        s += f"""    ; pull this kernel's code into L2: 4 lines per wave
    s_getpc_b64 s[4:5]
L_pc:
    s_lshr_b32 s3, s2, 3
    s_lshl_b32 s3, s3, 2
    s_add_u32 s3, s3, s{sW}
    s_lshl_b32 s3, s3, 9
    v_and_b32 v3, 3, v0
    v_lshl_add_u32 v3, v3, 7, s3
    v_min_u32 v3, L_exit-L_pc, v3
    v_mov_b32 v{TMP+1}, s5
    v_add_co_u32 v{TMP}, vcc, s4, v3
    s_nop 1
    v_addc_co_u32 v{TMP+1}, vcc, 0, v{TMP+1}, vcc
    global_load_dword v{vDUM}, v[{TMP}:{TMP+1}], off
"""
    s += f"    s_mov_b32 s{sC}, {CSCALE:#x}\n"
    for i in range(4):
        s += f"    s_xor_b32 s3, s{sW}, {i}\n    s_lshl_b32 s{sXw+i}, s3, 10\n"
    s += f"""    ; attention output (own stores / cluster loads), output-projection weights
    s_lshl_b32 s3, s{sB}, 2
    s_add_u32 s3, s3, s{sHG}
    s_mul_i32 s3, s3, {8 * 36864}
    s_lshl_b32 s4, s{sW}, 13
    s_add_u32 s3, s3, s4
    s_lshl_b32 s5, s{sHG}, 20
    s_lshl_b32 s6, s{sJ}, 8
    s_add_u32 s5, s5, s6
"""
    for n in range(4):
        s += f"""    s_xor_b32 s6, s{sJ}, {n}
    s_mul_i32 s7, s6, 73728
    s_add_u32 s{sOn+n}, s3, s7
    s_lshl_b32 s7, s6, 18
    s_add_u32 s{sWOn+n}, s5, s7
"""
    for i in range(4):
        s += f"    s_add_u32 s{sOs+i}, s{sOn}, s{sXw+i}\n"
    s += f"""    s_sub_u32 s4, 32768, s4
    s_add_u32 s4, s4, s{sXw+3}
    v_add_u32 v{vL8}, s4, v{vL16}
    s_and_b32 s6, s{sB}, 7
    s_lshl_b32 s6, s6, 2
    s_add_u32 s6, s6, s{sW}
    s_lshl_b32 s7, s6, 15
    s_add_u32 s{sPFo}, s5, s7
    s_and_b32 s6, s6, 30
    s_lshl_b32 s7, s6, 17
    s_lshl_b32 s6, s{sH0}, 8
    s_add_u32 s7, s7, s6
    s_add_u32 s{sPFq}, s7, 256
    s_lshl_b32 s3, s{sB}, 2
    s_add_u32 s3, s3, s{sJ}
    s_lshl_b32 s3, s3, 2
"""
    for e in range(4):
        s += f"""    s_xor_b32 s4, s{sHG}, {e ^ 3}
    s_add_u32 s4, s4, s3
    s_lshl_b32 s4, s4, 2
    s_add_u32 s4, s4, s{sW}
    s_mul_i32 s4, s4, 6144
    s_add_u32 s{sMB+e}, s4, {WS_MB + (e % 3) * 2048}
"""
    s += f"""    s_xor_b32 s4, s{sHG}, s{sW}
    s_add_u32 s4, s4, s3
    s_lshl_b32 s4, s4, 12
    s_add_u32 s4, s4, {WS_M8}
    s_lshl_b32 s5, s{sW}, 10
    s_add_u32 s{sM8s}, s4, s5
    s_cmp_eq_u32 s{sW}, 0
    s_cselect_b32 s{sM8r}, s4, {OOB}
    s_mul_i32 s4, s{sB}, 147456
    s_lshl_b32 s5, s{sJ}, 8
    s_add_u32 s4, s4, s5
    s_xor_b32 s5, s{sHG}, s{sW}
    s_xor_b32 s6, s5, 3
    s_lshl_b32 s6, s6, 6
    s_lshl_b32 s7, s{sW}, 15
    s_add_u32 s6, s6, s7
    s_add_u32 s{sOut}, s4, s6
    s_lshl_b32 s5, s5, 6
    s_add_u32 s4, s4, s5
    s_add_u32 s4, s4, 131072
    s_cmp_eq_u32 s{sW}, 0
    s_cselect_b32 s{sO8ut}, s4, {OOB}
    v_lshlrev_b32 v3, 1, v2
"""
    for k in range(4):
        hs, u = k >> 1, k & 1
        s += f"""    v_add_u32 v{TMP}, {8*hs+u}, v3
    v_xor_b32 v{TMP}, v{TMP}, v1
    v_lshlrev_b32 v{TMP}, 4, v{TMP}
    v_lshl_add_u32 v{TMP}, v1, 8, v{TMP}
    v_add_u32 v{aX8+k}, {X8R}, v{TMP}
    v_add_u32 v{aXo+k}, s{sLw}, v{TMP}
    v_add_u32 v{aXo+4+k}, {VR}, v{aXo+k}
"""
    s += f"""    ; K read addresses
    v_and_b32 v{TMP}, 1, v2
    v_lshlrev_b32 v{TMP}, 1, v{TMP}
    v_lshrrev_b32 v{TMP+1}, 1, v2
    v_or_b32 v{TMP}, v{TMP}, v{TMP+1}           ; pi(g)
    v_lshlrev_b32 v{vOUT}, 10, v1
    v_lshl_add_u32 v{vOUT}, v{TMP}, 4, v{vOUT}
    v_lshrrev_b32 v{TMP+1}, 2, v1               ; r>>2
    v_and_b32 v{TMP+2}, 3, v1                   ; r&3
    v_lshlrev_b32 v{TMP+3}, 12, v{TMP+1}
    v_lshl_add_u32 v{TMP+3}, v{TMP+2}, 8, v{TMP+3}
"""
    for k in range(4):
        s += f"""    s_lshr_b32 s3, s{sXw+k}, 8
    v_add_u32 v3, s3, v{TMP}
    v_xor_b32 v3, v3, v1
    v_lshl_add_u32 v{aK+k}, v3, 4, v{TMP+3}
    v_add_u32 v{aK8+k}, s{sXw}, v{aK+k}
"""
    s += f"""    ; constant A operands: row-sum selector, partial-sum selectors
    v_mov_b32 v{NEGM}, 0
    v_cmp_eq_u32 vcc, 0, v{TMP+2}
    v_mov_b32 v3, 0x3f803f80
    v_and_b32 v{TMP}, 1, v1
    v_cndmask_b32 v3, v{NEGM}, v3, vcc
    v_cmp_eq_u32 vcc, v2, v{TMP+1}
    v_lshlrev_b32 v{TMP}, 4, v{TMP}
    v_mov_b32 v{TMP+3}, 0x3f80
"""
    for k in range(4): s += f"    v_accvgpr_write_b32 a{ONES+k}, v3\n"
    s += f"""    v_lshlrev_b32 v{TMP}, v{TMP}, v{TMP+3}
    v_cndmask_b32 v{TMP}, v{NEGM}, v{TMP}, vcc
    v_cmp_gt_u32 vcc, 2, v{TMP+2}
    v_accvgpr_write_b32 a{SELX+2}, 0
    v_accvgpr_write_b32 a{SELX+3}, 0
    v_accvgpr_write_b32 a{SELY}, 0
    v_accvgpr_write_b32 a{SELY+1}, 0
    v_cndmask_b32 v3, v{NEGM}, v{TMP}, vcc
    v_cndmask_b32 v{TMP}, v{TMP}, v{NEGM}, vcc
    v_accvgpr_write_b32 a{SELX}, v3
    v_accvgpr_write_b32 a{SELY+2}, v3
    v_accvgpr_write_b32 a{SELX+1}, v{TMP}
    v_accvgpr_write_b32 a{SELY+3}, v{TMP}
    v_and_b32 v{TMP}, 1, v2
    v_lshl_add_u32 v{TMP}, v{TMP}, 2, v{TMP+1}
    v_lshlrev_b32 v{TMP}, 1, v{TMP}             ; f
    v_lshlrev_b32 v{TMP+3}, 12, v2
    v_lshl_add_u32 v{TMP+3}, v{TMP+1}, 8, v{TMP+3}
    v_and_b32 v3, 1, v1
    v_lshl_add_u32 v{TMP+3}, v3, 3, v{TMP+3}
    v_lshrrev_b32 v{TMP+2}, 1, v{TMP+2}         ; c>>1
    s_lshl_b32 s4, s{sW}, 2
"""
    for t in range(8):
        s += f"""    s_xor_b32 s3, s4, {2*t}
    v_add_u32 v3, s3, v{TMP+2}
    v_xor_b32 v3, v3, v{TMP}
    v_lshl_add_u32 v{aVk+t}, v3, 4, v{TMP+3}
    v_add_u32 v{aV+t}, {VR}, v{aVk+t}
"""
    s += f"""    v_add_u32 v{aL16}, {X8R}, v{vL16}
    s_lshr_b32 s3, s{sW}, 1
    s_lshl_b32 s3, s3, 10
    s_and_b32 s4, s{sW}, 1
    s_lshl_b32 s4, s4, 3
    s_add_u32 s3, s3, s4
    s_add_u32 s3, s3, {P8R}
    v_add_u32 v{aP8w}, s3, v{vL16}
"""
    for k in range(4):
        s += f"    v_add_u32 v{TMP+4+k}, s{sXw+k}, v{aL16}\n"
    for k in range(1, 12): s += f"    v_mov_b32 v{NEGM+k}, 0\n"
    s += f"""    ; flag lines to poll: cluster members (same wave), reduction group
    v_and_b32 v{TMP}, 3, v0
    s_and_b32 s3, s{sFl}, {0xffffffff ^ (3 << 11):#x}
    v_lshl_add_u32 v{vFO}, v{TMP}, 11, s3
    s_and_b32 s3, s{sFl}, {0xffffffff ^ (3 << 9):#x}
    v_lshl_add_u32 v{TMP+1}, v{TMP}, 9, s3
    v_mul_u32_u24 v{TMP+2}, 640, v{TMP}
    v_xor_b32 v{TMP+2}, s{sFl}, v{TMP+2}
    s_cmp_eq_u32 s{sW}, 0
    s_cselect_b32 s3, 4, 0
    v_and_b32 v{TMP}, s3, v0
    v_cmp_ne_u32 vcc, 0, v{TMP}
    s_lshl_b32 s3, s{sW}, 2
    s_add_u32 s3, s3, {CKR}
    v_cndmask_b32 v{vFP}, v{TMP+1}, v{TMP+2}, vcc
    v_add_u32 v{aCK}, s3, v{vL16}
    v_lshrrev_b32 v{vPF}, 1, v0
    v_lshlrev_b32 v{vPF}, 13, v{vPF}
    v_and_b32 v{TMP}, 1, v0
    v_lshl_add_u32 v{vPF}, v{TMP}, 7, v{vPF}
    v_mov_b32 v{ONEV}, 1
"""
    return s

def emit(g, lin, opt):
    st = opt.get('stamps')
    n = [0]
    def stamp():
        k = n[0]; n[0] += 1
        a = 88 + 4 * (k & 1); b = 88 + 4 * ((k + 1) & 1)
        t = f"    s_memrealtime s[{a}:{a+1}]\n    s_memtime s[{a+2}:{a+3}]\n"
        if k > 0: t += f"    v_writelane_b32 v{STA}, s{b}, {k-1}\n    v_writelane_b32 v{STB}, s{b+2}, {k-1}\n"
        return t
    s = prologue(opt)
    if opt.get('kvsame'): s = s.replace(";KVSAME", f"    s_mov_b32 s{sKV}, 0")
    if st: s = s.replace(";STAMP\n", stamp())
    W = "    s_waitcnt lgkmcnt(0)\n"
    if st == 2:
        s = s.replace("L_restart:\n", "L_restart:\n" + stamp())
        s += W + stamp()
    done2 = False; nl = 0
    for o in lin:
        if not done2 and (o.kind not in ('L', 'S', 'G', 'N') or nl >= opt.get('p2at', 14)):
            if st == 2: s += W + stamp()
            s += prologue2(opt); done2 = True
            if st == 2: s += W + stamp()
        if st == 2 and o.kind == 'W' and n[0] == 5: s += W + stamp()
        nl += o.kind == 'L'
        s += (o.text if o.kind == 'X' else "    " + o.text) + "\n"
        if st and (o.kind == 'B' or 'L_ret_o1' in o.text): s += stamp()
        if st and ('offset:8 sc1' in o.text and o.kind == 'ST' or 'L_ret_pp' in o.text): s += "    s_waitcnt lgkmcnt(0)\n" + stamp()
    if st:
        s += "    s_waitcnt lgkmcnt(0)\n" + stamp() + "    s_waitcnt vmcnt(0) lgkmcnt(0)\n" + stamp() + "    s_waitcnt lgkmcnt(0)\n" + stamp()
        s += f"""    s_lshl_b32 s3, s2, 2
    s_add_u32 s3, s3, s{sW}
    s_lshl_b32 s3, s3, 9
    s_add_u32 s3, s3, 0x3000000
    s_mov_b32 s{SWS+2}, 0x4000000
    v_lshrrev_b32 v1, 2, v{vL16}
    buffer_store_dword v{STA}, v1, s[{SWS}:{SWS+3}], s3 offen
    buffer_store_dword v{STB}, v1, s[{SWS}:{SWS+3}], s3 offen offset:256
"""
        print("; stamps", n[0] - 1, file=sys.stderr)
        if opt.get('dbgwg') is not None:
            s += f"""    s_cmp_lg_u32 s2, {opt['dbgwg']}
    s_cbranch_scc1 L_exit
    s_cmp_lg_u32 s{sW}, 0
    s_cbranch_scc1 L_exit
    v_readlane_b32 s3, v{STA}, 0
    v_lshrrev_b32 v1, 1, v1
    v_subrev_u32 v1, {2 * opt.get('dbgoff', 0)}, v1
    s_mov_b32 s{SDBG+2}, 64
    s_nop 3
    v_subrev_u32 v{STA}, s3, v{STA}
    s_sleep 127
    s_sleep 127
    s_sleep 127
    buffer_store_short v{STA}, v1, s[{SDBG}:{SDBG+3}], 0 offen
"""
    s += "    s_endpgm\n" + g.tail + "L_exit:\n    s_endpgm\n"
    return s

def build(opt):
    g = Gen(opt)
    g.proj('Q0'); g.attn(0); o0 = g.ost
    g.proj('Q1'); g.attn(1); o1 = g.ost
    g.wrot()
    g.proj('W0', gate=[g.gate0], own=[g.gate0])
    g.proj('W1', first=False, gate=[g.gate1], own=o1)
    g.final()
    body = emit(g, g.finish(), opt)
    nv = 512
    s = "; fused MHA block: Q projection, attention, output projection and reduction in one launch\n"
    s += "; @launch grid=(256,1,1) block=(256,1,1) lds=163840\n"
    s += '.amdgcn_target "amdgcn-amd-amdhsa--gfx950"\n.text\n' + body
    s += f""".section .rodata,"a"
.p2align 6
.amdhsa_kernel {KNAME}
  .amdhsa_next_free_vgpr 512
  .amdhsa_next_free_sgpr 102
  .amdhsa_accum_offset 256
  .amdhsa_group_segment_fixed_size 0
  .amdhsa_kernarg_size 64
  .amdhsa_user_sgpr_count 2
  .amdhsa_user_sgpr_kernarg_segment_ptr 1
  .amdhsa_system_sgpr_workgroup_id_x 1
.end_amdhsa_kernel
"""
    return s

if __name__ == "__main__":
    opt = {}
    out = sys.argv[1]
    for a in sys.argv[2:]:
        k, v = a.split("=")
        opt[k] = int(v) if v.lstrip('-').isdigit() else v.replace('+', ' ')
    open(out, "w").write(build(opt))
```

```python
import re

def R(f, a, n=1):
    return [(f, a + i) for i in range(n)]
def rs(f, a, n=1):
    return f"{f}{a}" if n == 1 else f"{f}[{a}:{a+n-1}]"

ASYNC_LGKM = ('DS', 'DW')
ASYNC_VM = ('L', 'G', 'ST')
VALU = ('E', 'V', 'P', 'C')

class Op:
    n = 0
    def __init__(self, kind, text, rd=(), wr=(), **kw):
        self.kind, self.text, self.rd, self.wr = kind, text, list(rd), list(wr)
        self.preds = []
        self.succs = []
        self.needs = []
        self.est = kw.get('est', -1)
        self.pin = kw.get('pin')
        self.lst = None
        self.gap = None
        self.idx = None
        self.tag = kw.get('tag')
        self.lds_rd = kw.get('lds_rd', [])
        self.lds_wr = kw.get('lds_wr', [])
        self.private = kw.get('private', False)
        self.nofence = kw.get('nofence', False)
        self.soft = kw.get('soft')
        self.cost = kw.get('cost')
        self.firm = kw.get('firm', False)
        Op.n += 1
        self.seq = Op.n

class Prog:
    LAT_DS = 6
    LAT_G = 40
    WIN = 3
    ALT = 1
    TTW = 2
    VSP = 0.5
    DSP = 1.0
    OVF = 1
    VMW = 3
    ESP = 1.5
    LDSCAP = 3
    def __init__(self):
        self.ops = []
        self.mf = []
        self.lastw = {}
        self.readers = {}
        self.fence_op = None
    def nm(self):
        return len(self.mf)
    def dep(self, a, b, dist):
        if a is b: return
        b.preds.append((a, dist)); a.succs.append((b, dist))
    def _dist(self, a, b, raw):
        if a.kind == 'M' and b.kind == 'M': return 1
        if raw:
            if a.kind == 'DS': return self.LAT_DS
            if a.kind == 'G': return self.LAT_G
            if a.kind == 'M': return 4
            if b.kind == 'M': return 2
            if a.kind == 'E': return 1
            if b.kind == 'P': return 1
            if a.kind == 'S' and b.kind == 'L': return 1
            return 0
        if a.kind == 'M':
            return 0 if b.kind in ('DS', 'G') else 2
        if b.kind == 'M': return 1
        if a.kind in ('ST', 'L', 'G'): return 1
        return 0
    def add(self, op):
        for r in op.rd:
            w = self.lastw.get(r)
            if w is not None:
                self.dep(w, op, self._dist(w, op, True))
                if w.kind in ('DS', 'G') and w not in op.needs: op.needs.append(w)
        for r in op.wr:
            w = self.lastw.get(r)
            if w is not None:
                d = self._dist(w, op, False)
                if w.kind == 'M' and op.kind != 'M': d = 4
                self.dep(w, op, d)
                if w.kind in ('DS', 'G') and w.kind != op.kind and w not in op.needs: op.needs.append(w)
            for q in self.readers.get(r, ()):
                self.dep(q, op, self._dist(q, op, False))
        for r in op.rd:
            self.readers.setdefault(r, []).append(op)
        for r in op.wr:
            self.lastw[r] = op
            self.readers[r] = []
        if op.kind == 'M':
            op.idx = len(self.mf); self.mf.append(op)
        if self.fence_op is not None and not op.nofence and op.kind != 'M':
            self.dep(self.fence_op, op, 0)
        self.ops.append(op)
        return op
    def fence(self, text, kind='X'):
        f = Op(kind, text, pin=self.nm() - 1)
        for o in self.ops:
            if not o.nofence and o.kind != 'M': self.dep(o, f, 0)
        self.ops.append(f)
        self.fence_op = f
        return f

    def schedule(self):
        N = len(self.mf)
        BIG = N + 10
        indeg = {o: len(o.preds) for o in self.ops}
        topo = [o for o in self.ops if indeg[o] == 0]
        i = 0
        while i < len(topo):
            for s, _ in topo[i].succs:
                indeg[s] -= 1
                if indeg[s] == 0: topo.append(s)
            i += 1
        if len(topo) != len(self.ops):
            rem = set(self.ops) - set(topo)
            o = min(rem, key=lambda x: x.seq); path = []
            while o not in path:
                path.append(o); o = next(p for p, _ in o.preds if p in rem)
            for x in path[path.index(o):]: print("CYCLE", x.seq, x.kind, x.pin, x.idx, x.text[:90], x.lds_wr[:1])
            raise Exception("dependency cycle")
        hard = {}
        for o in reversed(topo):
            if o.kind == 'M':
                o.lst = o.due = o.idx; hard[o] = o.idx - 1; continue
            l = BIG; h = N - 1; du = BIG
            for s, d in o.succs:
                l = min(l, s.lst - d); h = min(h, hard[s]); du = min(du, s.due - d)
            if o.pin is not None:
                assert o.pin <= h, ("pinned op too late", o.text, o.pin, h)
                l = o.pin; h = o.pin; du = o.pin
            if o.soft is not None:
                l = min(l, o.soft)
                if o.firm: du = min(du, o.soft)
            o.lst = l; hard[o] = h; o.due = du
        es = sorted([o for o in self.ops if o.kind == 'E'], key=lambda o: (-o.lst, -o.seq))
        for x, y in zip(es, es[1:]):
            y.lst = min(y.lst, x.lst - self.ESP)
        es.sort(key=lambda o: (-o.due, -o.seq))
        for x, y in zip(es, es[1:]):
            y.due = min(y.due, x.due - self.ESP)
        vs = sorted([o for o in self.ops if o.kind in ('V', 'P')], key=lambda o: (-o.due, -o.seq))
        for x, y in zip(vs, vs[1:]):
            y.due = min(y.due, x.due - self.VSP); y.lst = min(y.lst, y.due)
        ds = sorted([o for o in self.ops if o.kind == 'DS'], key=lambda o: (-o.due, -o.seq))
        for x, y in zip(ds, ds[1:]):
            y.due = min(y.due, x.due - self.DSP); y.lst = min(y.lst, y.due)
        for o in self.ops:
            if o.kind == 'DS' and not o.private and self.WIN is not None:
                if o.soft is None: o.est = max(o.est, int(o.due) - self.WIN)
        seen = set(); waitgap = set()
        for m in self.mf:
            nw = [w for w in m.needs if w not in seen]
            if nw: waitgap.add(m.idx - 1); seen.update(nw)
        fill = [o for o in self.ops if o.kind != 'M']
        byhard = {}
        for o in fill: byhard.setdefault(hard[o], []).append(o)
        npl = {o: sum(1 for p, _ in o.preds if p.kind != 'M') for o in fill}
        ready = set(o for o in fill if npl[o] == 0)
        def est(o):
            e = o.est
            for p, d in o.preds:
                e = max(e, (p.idx if p.kind == 'M' else p.gap) + d)
            if o.pin is not None: e = max(e, o.pin)
            return e
        def hest(o):
            return max([p.idx for p, _ in o.preds if p.kind == 'M'] + [-1])
        estc = {o: est(o) for o in ready}
        gaps = {g: [] for g in range(-1, N)}
        def place(o, g):
            assert hest(o) <= g, ("forced before its MFMA producer", o.text, g, hest(o))
            o.gap = g; gaps[g].append(o); ready.discard(o)
            for s, _ in o.succs:
                if s.kind != 'M':
                    npl[s] -= 1
                    if npl[s] == 0:
                        ready.add(s); estc[s] = est(s)
        def force(o, g):
            if o.gap is not None: return
            for p, _ in sorted(o.preds, key=lambda x: x[0].seq):
                if p.kind != 'M' and p.gap is None: force(p, g)
            place(o, g)
        ldsw = lambda o: (2 if 'b128' in o.text else 1) if o.kind in ASYNC_LGKM else 0
        cost = lambda o: o.cost if o.cost is not None else (2 if o.kind in ('E', 'L', 'G', 'ST') else (0 if o.kind == 'X' else 1))
        for g in range(-1, N):
            if g == -1:
                while True:
                    c = sorted([o for o in ready if estc[o] <= -1 or (o.est <= -1 and hest(o) <= -1 and o.kind in ('L', 'S', 'G') and o.pin is None)], key=lambda o: (o.lst, o.seq))
                    c = [o for o in c if o.kind in ('L', 'S') and o.nofence]
                    if not c: break
                    place(c[0], g)
            for o in sorted(byhard.get(g, []), key=lambda o: o.seq): force(o, g)
            if g == -1: continue
            scal = lambda o: o.kind in ('S', 'B')
            cap = 2 - sum(cost(o) for o in gaps[g] if not scal(o))
            ns = sum((2 if o.kind == 'B' else 1) for o in gaps[g] if scal(o)) + (1 if g in waitgap else 0)
            if ns > 1: cap -= ns - 1
            extra = 0
            while True:
                c = sorted([o for o in ready if estc[o] <= g and o.pin is None], key=lambda o: (o.lst, o.seq))
                hasv = any(o.kind in VALU for o in gaps[g])
                c = [o for o in c if o.kind in VALU or scal(o) or not (hasv and any(p.gap == g and p.kind in VALU for p, _ in o.preds))]
                ldsu = sum(ldsw(o) for o in gaps[g])
                cs = [o for o in c if scal(o)]
                cm = [o for o in c if o.kind in ASYNC_VM]
                ce = [o for o in c if cost(o) >= 2 and o.kind in VALU]
                cd = [o for o in c if ldsw(o)]
                cv = [o for o in c if o.kind in VALU and cost(o) == 1]
                pick = None
                if cs and (ns < 1 or (cap >= 1 and cs[0].lst <= g and estc[cs[0]] + 2 <= g)): pick = cs[0]
                elif cap == 2 and cm and cm[0].lst <= g + self.VMW and not any(o.kind in ASYNC_VM for o in gaps[g - 1]): pick = cm[0]
                elif cap == 2:
                    dd = cd and cd[0].due <= g; de = ce and ce[0].due <= g; dv = cv and min(o.due for o in cv) <= g
                    pair = (cd and cv) or len(cv) >= 2 or (len(cd) >= 2 and cd[1].lst <= g + self.TTW)
                    if de and not (dd and cd[0].due < ce[0].due): pick = ce[0]
                    elif dd: pick = cd[0]
                    elif dv: pick = min(cv, key=lambda o: (o.due, o.seq))
                    elif ce and (ce[0].lst <= g or not pair): pick = ce[0]
                    elif cd: pick = cd[0]
                    elif cv: pick = cv[0]
                    elif cm: pick = cm[0]
                elif cap == 1:
                    fit = [o for o in cd if ldsu + ldsw(o) <= self.LDSCAP]
                    dvs = [o for o in cv if o.due <= g]
                    if ldsu == 0 and cd: pick = cd[0]
                    elif fit and fit[0].due <= g and not (dvs and min(o.due for o in dvs) <= fit[0].due): pick = fit[0]
                    elif dvs: pick = min(dvs, key=lambda o: (o.due, o.seq))
                    elif cv: pick = cv[0]
                    elif fit and fit[0].lst <= g + self.TTW: pick = fit[0]
                if pick is None and extra < 1:
                    late = [o for o in cd + cv + ce if o.due + self.OVF <= g]
                    if late: pick = min(late, key=lambda o: (o.due, o.seq)); extra += 1
                if pick is None: break
                if scal(pick):
                    if ns >= 1: cap -= 1
                    ns += 1
                else: cap -= cost(pick)
                place(pick, g)
        assert all(o.gap is not None for o in fill)
        out = []
        cls = lambda o: 0 if o.kind in ('S', 'B', 'X') else (2 if o.kind in VALU else 1)
        for g in range(-1, N):
            if g >= 0: out.append(self.mf[g])
            l = gaps[g]
            pos = {o: i for i, o in enumerate(l)}
            done = set(); rem = list(l)
            big = len(l) > 4
            while rem:
                c = [o for o in rem if all((p not in pos) or (p in done) for p, _ in o.preds)]
                o = min(c, key=(lambda o: pos[o]) if big else (lambda o: (cls(o), pos[o])))
                out.append(o); done.add(o); rem.remove(o)
        self.gaps = gaps
        return out

def insert_waits(lin):
    pos = {o: i for i, o in enumerate(lin)}
    want = {}
    lastm = None
    for i, o in enumerate(lin):
        if o.needs:
            at = i
            if o.kind == 'M' and lastm is not None and all(pos[w] < lastm for w in o.needs):
                at = lastm + 1
            want.setdefault(at, []).extend(o.needs)
        if o.kind == 'M': lastm = i
    out = []; lq = []; vq = []
    for i, o in enumerate(lin):
        if i in want:
            ln = vn = None
            for w in want[i]:
                assert pos[w] < i, ("need before issue", w.text, o.text)
                if w in lq:
                    k = len(lq) - 1 - lq.index(w); ln = k if ln is None else min(ln, k)
                if w in vq:
                    k = len(vq) - 1 - vq.index(w); vn = k if vn is None else min(vn, k)
            t = []
            if vn is not None:
                vn = min(vn, 63); t.append(f"vmcnt({vn})"); done_v = vq[:len(vq) - vn]; vq = vq[len(vq) - vn:]
            else: done_v = []
            if ln is not None:
                ln = min(ln, 15); t.append(f"lgkmcnt({ln})"); done_l = lq[:len(lq) - ln]; lq = lq[len(lq) - ln:]
            else: done_l = []
            if t:
                w = Op('W', "s_waitcnt " + " ".join(t)); w.done = done_v + done_l
                out.append(w)
        out.append(o)
        if o.kind in ASYNC_LGKM: lq.append(o)
        if o.kind in ASYNC_VM: vq.append(o)
    return out

def fix_hazards(lin):
    out = []
    def states(o):
        if o.kind == 'X': return 0
        m = re.match(r"s_nop (\d+)", o.text)
        return int(m.group(1)) + 1 if m else 1
    nops = 0
    for o in lin:
        need = 0; dist = 0
        rd, wr = set(o.rd), set(o.wr)
        for p in reversed(out):
            if dist >= 9: break
            pw, pr = set(p.wr), set(p.rd)
            req = 0
            if p.kind == 'M':
                if o.kind == 'M':
                    if pw & set(o.ab): req = 8
                    elif pw & set(o.c) and set(o.c) != pw: req = 6
                elif pw & (rd | wr): req = 8
                elif o.kind in VALU and set(p.c) & wr: req = 3
            elif p.kind in VALU:
                if o.kind == 'M' and pw & rd: req = 2
                if o.kind == 'P' and pw & rd: req = 2
                if p.kind == 'E' and o.kind != 'E' and pw & rd: req = max(req, 1)
                sw = {r for r in pw if r[0] in ('s', 'vcc')}
                if sw & rd:
                    req = max(req, 5 if o.kind in ASYNC_VM else 2)
                if 'readfirstlane' in o.text and pw & rd: req = max(req, 1)
            elif p.kind == 'ST' and pr & wr: req = 2
            elif p.kind == 'S' and ('m0', 0) in pw and o.kind == 'L': req = 1
            need = max(need, req - dist)
            dist += states(p)
        if need > 0:
            out.append(Op('N', f"s_nop {need-1}")); nops += need
        out.append(o)
    return out, nops

def verify_lds(lin):
    done_at = {}; bars = []
    for i, o in enumerate(lin):
        if o.kind == 'W':
            for w in o.done: done_at[w] = i
        if o.kind == 'B': bars.append(i)
    def ok(a, i, private):
        d = done_at.get(a)
        if d is None or d > i: return False
        return private or any(d < b < i for b in bars)
    lastw = {}; rds = {}
    for i, o in enumerate(lin):
        for p, want in o.lds_rd:
            w = lastw.get(p)
            assert w is not None, ("read of unwritten LDS", p, o.text)
            assert w[1] == want, ("wrong content", p, want, w[1], o.text)
            assert ok(w[0], i, o.private), ("RAW not covered", p, want, o.text)
            rds.setdefault(p, []).append(o)
        for p, what in o.lds_wr:
            for r in rds.get(p, []):
                assert ok(r, i, r.private), ("WAR not covered", p, what, r.text, o.text)
            rds[p] = []
            lastw[p] = (o, what)

def stats(lin):
    t = 0; prev = None; gapstart = None; res = []
    for o in lin:
        if o.kind == 'X': continue
        if o.kind == 'M':
            if gapstart is not None:
                t = max(t, gapstart + 16)
                res.append(t - gapstart)
            gapstart = t; t += 4
        elif o.kind in ('S', 'W', 'B', 'N'):
            m = re.match(r"s_nop (\d+)", o.text)
            t += 4 * (1 + o.text.count("\n    s_")) + (int(m.group(1)) if m else 0) + (12 if o.kind == 'B' else 0)
        else:
            if gapstart is not None: t = max(t, gapstart + 8)
            if o.kind not in VALU and prev is not None and prev.kind in VALU: t += 8
            if o.kind in ASYNC_LGKM and prev is not None and prev.kind in ASYNC_LGKM: t += 3
            t += 8 if o.kind in ('E', 'L', 'G', 'ST', 'C') else 4
        prev = o
    return t, res
```

```python
import sys, math, struct, re
from sched import *

KNAME = "standalone__mha_block_cached__near_ridge_kernel"
f2u = lambda x: struct.unpack("<I", struct.pack("<f", x))[0]
R1, R2, SP, NEGM = 4, 76, 148, 202
aK, aK8, aV, aVk, aX8 = 214, 218, 222, 230, 238
aL16, aP8w, vK, vV, vW, vL16, TMP, aQ8 = 242, 243, 244, 245, 246, 247, 248, 252
STA, STB = 2, 3
RCP, aCK = aX8, aX8 + 3
vL8, vFW, vF, vFO = aQ8, aQ8 + 1, aQ8 + 2, aQ8 + 3
ONEV, vIR = 0, 1
vX, aXo, vX8, vLN, vR, vG, vZ = R2, R2 + 4, R2 + 12, R2 + 13, R2 + 14, R2 + 15, R2 + 16
vFP, vOUT, vT = SP, SP + 1, SP + 4
XF, FB, NFB, QF0, QF80, P8F, X8B, ONES, LACC = 0, 128, 12, 176, 208, 224, 232, 240, 244
QFR = [lambda q, s: QF0 + (q * 4 + s) * 4, lambda q, s: q * 64 + s * 4]
QF8 = [QF80, 16]
WXF = [(32, 48), (80, 96), (112, 208), (176, 192)]
SELX, SELY = 64, 68
SX, SK, SV, SWQ, SWO, SWS, SOUT, SDBG = 8, 12, 16, 20, 24, 28, 32, 84
sW, sB, sH0, sLw, sKV, sIni, sC, sD, sT, sHG, sJ, sFl = 36, 37, 38, 39, 40, 41, 42, 43, 44, 45, 46, 47
sOs, sXn, sWQn, sWOn, sOn = 48, 52, 56, 60, 64
sMB, sMR, sM8s, sM8r, sOut, sO8ut, sThr, sLo, sCnt, sPFo, sT2, sU = 68, 71, 72, 73, 74, 75, 76, 78, 79, 96, 97, 98
sXw = 80
KR, VR, X8R, MISC = 0, 65536, 131072, 147456
P8R, Q8R, CKR = MISC, MISC + 4096, MISC + 8192
WS_MB, WS_M8, WS_FL, WS_SIZE = 0x1400000, 0x1C00000, 0x1F00000, 0x2000000
OOB = 0x7f000000
CSCALE = f2u(math.log2(math.e) / math.sqrt(128.0))
L_LO, L_HI = f2u(2.0 ** -12), f2u(2.0 ** 30)

def regs_of(tok):
    tok = tok.strip()
    m = re.fullmatch(r"([vas])(\d+)", tok)
    if m: return R(m.group(1), int(m.group(2)))
    m = re.fullmatch(r"([vas])\[(\d+):(\d+)\]", tok)
    if m: return R(m.group(1), int(m.group(2)), int(m.group(3)) - int(m.group(2)) + 1)
    return [('vcc', 0)] if tok == 'vcc' else []

def merge(a, b, na, nb, front=1.0):
    ca = cb = 0; da = db = False
    while not (da and db):
        if not db and (da or cb * na * front <= ca * nb):
            try: cb += next(b)
            except StopIteration: db = True
        else:
            try: ca += next(a)
            except StopIteration: da = True

def run(g):
    for _ in g: pass

class Gen:
    def __init__(self, opt):
        self.p = p = Prog(); self.opt = opt
        p.LAT_DS = opt.get('lat', 6); p.WIN = opt.get('win', 4); p.ESP = opt.get('esp', 20) / 10
        p.LDSCAP = opt.get('ldscap', 3); p.TTW = opt.get('ttw', 2); p.LAT_G = opt.get('latg', 70)
        p.VMW = opt.get('vmw', 60); p.DSP = opt.get('dsp', 10) / 10; p.VSP = opt.get('vsp', 5) / 10; p.OVF = opt.get('ovf', 1)
        self.fb = 0; self.pieces = []; self.bars = []; self.slotseq = {'K': 0, 'V': 0}
        self.ring_rd = []; self.marks = []; self.tail = ""; self.pend = []; self.x8 = 0
    def M(self, d, a, b, c, f='v'):
        o = Op('M', f"v_mfma_f32_16x16x32_bf16 {rs(f, d, 4)}, {rs(a[0], a[1], 4)}, {rs(b[0], b[1], 4)}, " + ("0" if c is None else rs(f, c, 4)),
               rd=R(*a, 4) + R(*b, 4) + ([] if c is None else R(f, c, 4)), wr=R(f, d, 4))
        o.ab = R(*a, 4) + R(*b, 4); o.c = [] if c is None else R(f, c, 4)
        return self.p.add(o)
    def D(self, dst, areg, off, lds, bar=None, **kw):
        o = Op('DS', f"ds_read_b128 {rs(dst[0], dst[1], 4)}, v{areg} offset:{off}", rd=R('v', areg), wr=R(*dst, 4), lds_rd=lds, **kw)
        self.p.add(o)
        if bar: self.p.dep(bar, o, 0); self.ring_rd.append(o)
        return o
    def T(self, dst, areg, off, lds, bar):
        o = Op('DS', f"ds_read_b64_tr_b16 {rs('a', dst, 2)}, v{areg} offset:{off}", rd=R('v', areg), wr=R('a', dst, 2), lds_rd=lds)
        self.p.add(o); self.p.dep(bar, o, 0); self.ring_rd.append(o)
        return o
    def V(self, text, rd, wr, kind='V', **kw):
        return self.p.add(Op(kind, text, rd=rd, wr=wr, **kw))
    def S(self, text, rd, wr, **kw):
        return self.p.add(Op('S', text, rd=rd, wr=wr, **kw))
    def asm(self, text, **kw):
        lines = [l.split(';')[0].strip() for l in text.split('\n')]
        lines = [l for l in lines if l]; i = 0; last = None
        while i < len(lines):
            l = lines[i]; mn, rest = l.split(None, 1); t = rest.split(',')
            if mn.startswith('s_cmp'):
                t2 = lines[i + 1].split(None, 1)[1].split(',')
                last = self.S(l + "\n    " + lines[i + 1], sum((regs_of(x) for x in t + t2[1:]), []), regs_of(t2[0]), **kw); i += 2; continue
            last = self.p.add(Op('S' if mn[0] == 's' else 'V', l, rd=sum((regs_of(x) for x in t[1:]), []), wr=regs_of(t[0]), **kw)); i += 1
        return last
    def G(self, dst, n, vreg, srd, soff, imm, flags, **kw):
        w = {1: "dword", 4: "dwordx4"}[n]
        so = f"s{soff}" if soff is not None else "0"
        return self.p.add(Op('G', f"buffer_load_{w} {rs(dst[0], dst[1], n)}, v{vreg}, {rs('s', srd, 4)}, {so} offen offset:{imm} {flags}",
                             rd=R('v', vreg) + ([] if soff is None else R('s', soff)), wr=R(*dst, n), **kw))
    def ST(self, reg, n, vreg, srd, soff, imm, flags, **kw):
        w = {1: "dword", 4: "dwordx4"}[n]
        return self.p.add(Op('ST', f"buffer_store_{w} {rs('v', reg, n)}, v{vreg}, {rs('s', srd, 4)}, s{soff} offen offset:{imm} {flags}",
                             rd=R('v', reg, n) + R('v', vreg) + R('s', soff), **kw))
    def bar(self, need=()):
        pin = max(self.p.nm() - self.opt.get('lead', 9), -1)
        o = Op('B', "s_barrier", pin=pin)
        self.p.add(o)
        o.drain = set(self.ring_rd); self.ring_rd = []
        for r in list(o.drain) + list(need): o.needs.append(r); self.p.dep(r, o, self.opt.get('drain', 4))
        if self.bars: self.p.dep(self.bars[-1], o, 0)
        self.bars.append(o)
        for minpin, fn in list(self.pend):
            if pin >= minpin: self.pend.remove((minpin, fn)); fn(o)
        return o
    def nextfb(self):
        r = FB + 4 * self.fb; self.fb = (self.fb + 1) % NFB; return r
    def slot(self, part):
        s = [3, 1, 2, 0][self.slotseq[part] % 4]; self.slotseq[part] += 1; return s
    def piece(self, cells, content, ldsreg, ldsoff, src, bar, key=None, gate=None, sp=4):
        prod = [self.p.lastw.get(r) for r in (('v', src[1]), ('s', src[2]), ('s', ldsreg))]
        self.pieces.append(dict(cells=cells, content=content, ldsreg=ldsreg, ldsoff=ldsoff, src=src, bar=bar, key=key, gate=gate, sp=sp,
                                prod=[x for x in prod if x is not None]))
    def item(self, part, sl, content, bar, src, key=None, sp=4):
        for j in range(4):
            self.piece([(part, sl, j)], content, sLw, (KR if part == 'K' else VR) + sl * 16384 + j * 1024, src(j), bar, key, sp=sp)
    def poll(self, name, vreg, srd, soff, imm, want, est, after=(), lag=0):
        lat = self.p.LAT_G; self.p.LAT_G = lag
        cmp = "v_cmp_gt_u32" if want > 1 else "v_cmp_ne_u32"
        g = self.G(('v', vF), 1, vreg, srd, soff, imm, "sc1", est=est, soft=est)
        for a in after: self.p.dep(a, g, 0)
        c = self.V(f"{cmp} vcc, {want}, v{vF}\n    s_cbranch_vccnz L_spin_{name}\nL_ret_{name}:", R('v', vF) + R('v', vreg), [('vcc', 0)], kind='C', cost=2, soft=est + lag)
        self.p.LAT_G = lat
        self.tail += f"""L_spin_{name}:
    s_mov_b32 s{sCnt}, 0
L_spin2_{name}:
    {g.text}
    s_waitcnt vmcnt(0)
    {cmp} vcc, {want}, v{vF}
    s_cbranch_vccz L_ret_{name}
    s_add_u32 s{sCnt}, s{sCnt}, 1
    s_cmp_lt_u32 s{sCnt}, 0x40000
    s_cbranch_scc0 L_ret_{name}
    s_sleep 1
    s_branch L_spin2_{name}
"""
        return c
    def flag(self, word, stores, after=(), lag=40):
        f = self.ST(ONEV, 1, vFW, SWS, sFl, 4 * word, 'sc1')
        for s in stores: f.needs.append(s); self.p.dep(s, f, lag)
        for a in after: self.p.dep(a, f, 0)
        f.soft = -1000
        return f
    def pack(self, src, dst, scale=None, swap=False, acc=None, **kw):
        if scale is not None:
            for i in range(8): self.asm(f"v_mul_f32 v{src+i}, {scale}, v{src+i}", **kw)
        for i in range(4): self.asm(f"v_cvt_pk_bf16_f32 v{dst+i}, v{src+2*i}, v{src+2*i+1}", **kw)
        if swap:
            for i in range(2):
                self.V(f"v_permlane16_swap_b32 v{dst+i}, v{dst+2+i}", [('v', dst + i), ('v', dst + 2 + i)], [('v', dst + i), ('v', dst + 2 + i)], kind='P', **kw)
        if acc is not None:
            for i in range(4): self.asm(f"v_accvgpr_write_b32 a{acc+i}, v{dst+i}", **kw)

    def witem(self, name, n, hs, b, sl=None, sp=4):
        part = 'KV'[hs]; ph = int(name[1]); wf = self.opt.get('wflags', '')
        if sl is None: sl = self.slot(part)
        c = (name, n, hs)
        if name[0] == 'Q': self.item(part, sl, c, b, lambda j: (SWQ, vW, sWQn + n, (hs * 64 + 4 * j) * 8192 + ph * 256, wf), sp=sp)
        else: self.item(part, sl, c, b, lambda j: (SWO, vW, sWOn + n, (ph * 128 + 64 * hs + 16 * j) * 1024, wf), sp=sp)
        return sl, c
    def pgroups(self, name, n, items, b, acc, zero, last):
        isq = name[0] == 'Q'
        ks = [2 * hs + u for hs in sorted(items) for u in range(2)]
        x8 = {}
        for k in ks:
            if len(ks) == 4: x8[k] = P8F + 4 * k
            else: x8[k] = X8B + 4 * (k & 1)
            if isq: self.D(('a', x8[k]), aX8 + k, n * 4096, [(('X8', n), 'X8')], bar=b)
            else: self.D(('a', x8[k]), aL16, (n * 4 + k) * 1024, [(('X8', n), (name, n))], bar=b)
        xf = (lambda q, k: XF + (q * 16 + n * 4 + k) * 4) if isq else (lambda q, k: WXF[n][q] + 4 * k)
        for t in range(8):
            f = {}
            for k in ks:
                hs, u = k >> 1, k & 1; sl, c = items[hs]
                f[k] = self.nextfb()
                for a in range(2):
                    self.T(f[k] + 2 * a, (aVk, aV)[hs] + t, sl * 16384 + (2 * u + a) * 1024, [(('KV'[hs], sl, 2 * u + a), c)], b)
            nq = 3 if t < 2 else 2
            for q in range(nq):
                d = acc + (q * 8 + t) * 4
                for i, k in enumerate(ks if q != 1 else ks[::-1]):
                    self.M(d, ('a', f[k]), ('a', xf(q, k) if q < 2 else x8[k]), None if (zero and i == 0) else d)
            if last and t & 1: self.proj_out(name, acc, t >> 1)
            yield nq * len(ks)
    def proj_out(self, name, acc, s):
        if name[0] == 'Q':
            h = int(name[1])
            if s == 0:
                self.pack(acc + 64, acc + 64, f"s{sC}", True)
                self.q8w = self.p.add(Op('DW', f"ds_write_b128 v{aQ8}, {rs('v', acc + 64, 4)} offset:{Q8R - X8R}", rd=R('v', acc + 64, 4) + R('v', aQ8), lds_wr=[(('Q8', 0), ('Q8', h))]))
            for q in range(2):
                r = acc + (q * 8 + 2 * s) * 4
                self.pack(r, r, f"s{sC}", True, acc=QFR[h](q, s))
        elif s < 3:
            if s == 0:
                self.pst = []
                self.pack(acc + 64, TMP)
                self.pst.append(self.ST(TMP, 4, vL16, SWS, sM8s, 0, 'sc1'))
            for q in range(2):
                r = acc + (q * 8 + 2 * s) * 4
                self.pack(r, r)
                self.pst.append(self.ST(r, 4, vL16, SWS, sMB + s, q * 1024, 'sc1'))
    def q0(self):
        p = self.p; opt = self.opt; xf = opt.get('xflags', '')
        self.marks.append(('Q0', p.nm()))
        xslots = [0, 2, 0, 1]; wslots = [1, 3, 2, 0]
        for n in range(4):
            b = self.bar()
            est = -1 if n == 0 else (n - 1) * 72 + opt.get('xest', 30)
            for a, part in enumerate('KV'):
                c = ('X', n, a)
                self.item(part, xslots[n], c, None, lambda j: (SX, vX + j, sXn + n, a * 16384 + j * 1024, xf), key=(est, 0, a), sp=opt.get('sp0', 3))
                for k in range(4):
                    self.D(('a', XF + (a * 16 + n * 4 + k) * 4), aXo + a * 4 + k, xslots[n] * 16384,
                           [((part, xslots[n], j), c) for j in range(4)], private=True, est=est, soft=est + 8)
            self.piece([('X8', n)], 'X8', sXw, X8R + n * 4096, (SX, vX8, sXn + n, 131072, xf), b, sp=opt.get('sp0', 3))
            items = {hs: self.witem('Q0', n, hs, b, wslots[n], sp=opt.get('sp0', 3)) for hs in range(2)}
            if n == 0: self.asm(setup_attn(), est=0)
            if n == 1:
                e = p.nm()
                o = p.add(Op('ST', f"buffer_atomic_add v{ONEV}, v{vZ}, {rs('s', SDBG, 4)}, s{sIni} offen sc1", rd=R('v', ONEV) + R('v', vZ), est=e, soft=e))
                p.dep(b, o, 0)
                self.asm(setup_scalar(), est=e)
            run(self.pgroups('Q0', n, items, b, R1, n == 0, n == 3))
    def wstage(self, name, gate, own):
        p = self.p; opt = self.opt; ph = int(name[1])
        self.marks.append((name, p.nm()))
        for n in range(4):
            b = self.bar()
            gt = own if n == 0 else gate
            self.piece([('X8', n)], (name, n), sXw + 3, X8R + n * 4096, (SWS, vL8, sOn + n, ph * 36864, 'sc1'), b, gate=gt)
            est = p.nm() - opt.get('gest', 110)
            for q in range(2):
                self.S(f"s_add_u32 s{sT2}, s{sOn+n}, {ph * 36864 + q * 4096}", R('s', sOn + n), R('s', sT2), est=est - 4)
                for s in range(4):
                    g = self.G(('a', WXF[n][q] + 4 * s), 4, vL16, SWS, sT2, s * 1024, 'sc1', est=est + 3 * (4 * q + s))
                    for x in gt:
                        p.dep(x, g, 0 if x.kind == 'C' else 30)
                        if x.kind == 'ST': g.needs.append(x)
            items = {hs: self.witem(name, n, hs, b) for hs in range(2)}
            if ph == 1 and n == 0: self.asm(setup_final(), est=p.nm())
            run(self.pgroups(name, n, items, b, R2, ph == 0 and n == 0, ph == 1 and n == 3))
    def attention(self):
        p = self.p; opt = self.opt
        Sr = lambda j, q: SP + (j * 2 + q) * 4
        S8 = SP + 32; P8o = SP + 52
        Pr = lambda u, q: SP + 36 + ((u & 1) * 2 + q) * 4
        OA = [R2, R1]
        kv = opt.get('kvflags', 'nt')
        st = {}
        def kvsp(h, i): return opt.get('spf', 12) if h == 0 and i < 2 else (opt.get('sp1', 9) if h == 0 or i < 2 else opt.get('sp2', 9))
        def kitem(h, i, b):
            sl = self.slot('K'); c = ('K', h, i)
            self.item('K', sl, c, b, lambda j: (SK, vK, sKV, h * 131072 + i * 16384 + j * 1024, kv), sp=(opt.get('sp0', 3) if h == 0 and i == 0 else kvsp(h, i - 1)))
            st['k'] = (sl, c, b)
        def vitem(h, i, b):
            sl = self.slot('V'); c = ('V', h, i)
            self.item('V', sl, c, b, lambda j: (SV, vV, sKV, h * 131072 + i * 16384 + j * 1024, kv), sp=kvsp(h, i))
            st['v'] = (sl, c, b)
        def softmax(src, dst):
            for i in range(4):
                self.V(f"v_exp_f32 v{src+i}, v{src+i}", R('v', src + i), R('v', src + i), kind='E')
            for i in range(2): self.asm(f"v_cvt_pk_bf16_f32 v{dst+i}, v{src+2*i}, v{src+2*i+1}")
        def head_start(h, b):
            for s in range(4):
                self.D(('a', QF8[h] + 4 * s), aQ8 + s, Q8R - X8R, [(('Q8', 0), ('Q8', h))], bar=b)
        def safe_call(h):
            qf = sum((R('a', QFR[h](q, s), 4) for q in range(2) for s in range(4)), [])
            self.V(f"s_cmp_eq_u32 s{sThr+h}, -1\n    s_cbranch_scc1 L_max{h}\nL_maxret{h}:", qf + R('a', QF8[h], 16), R('v', OA[h], 28) + R('v', NEGM, 12), kind='C', cost=2)
            self.tail += maxpass(h, OA[h])
        def A8(h, i):
            sl, c, b = st['k']
            if i == 0: safe_call(h)
            for s in range(4):
                f = self.nextfb()
                self.D(('a', f), aK8 + s, sl * 16384, [(('K', sl, j), c) for j in range(4)], bar=b)
                self.M(S8, ('a', f), ('a', QF8[h] + 4 * s), NEGM + 8 if s == 0 else S8)
            softmax(S8, P8o)
            st['dw'] = p.add(Op('DW', f"ds_write_b64 v{aP8w}, {rs('v', P8o, 2)} offset:{(i & 1) * 2048}", rd=R('v', P8o, 2) + R('v', aP8w),
                                lds_wr=[(('P8', i & 1), ('P8', h, i))]))
            p.dep(b, st['dw'], 0)
            yield 4
        def A(h, u):
            sl, c, b = st['k']
            for jj in range(2):
                j = (u & 1) * 2 + jj
                f = []
                for s in range(4):
                    f.append(self.nextfb())
                    self.D(('a', f[s]), aK + s, sl * 16384 + j * 1024, [(('K', sl, j), c)], bar=b)
                for q in range(2):
                    for i, s in enumerate(range(4) if q == 0 else range(3, -1, -1)):
                        self.M(Sr(j, q), ('a', f[s]), ('a', QFR[h](q, s)), NEGM + 4 * q if i == 0 else Sr(j, q))
                    softmax(Sr(j, q), Pr(u, q) + 2 * jj)
                yield 8
        def vfrag(t, uu):
            sl, c, b = st['v']
            f = self.nextfb()
            for a in range(2):
                self.T(f + 2 * a, aV + t, sl * 16384 + (2 * uu + a) * 1024, [(('V', sl, 2 * uu + a), c)], b)
            return f
        def p8frag(h, u):
            i = u >> 1; uu = u & 1
            self.D(('a', P8F + 4 * uu), aL16, P8R - X8R + (i & 1) * 2048 + uu * 1024, [(('P8', i & 1), ('P8', h, i))], bar=st['v'][2])
        bop = lambda u, q: ('v', Pr(u, q)) if q < 2 else ('a', P8F + 4 * (u & 1))
        acc = lambda h, t, q: OA[h] + (q * 8 + t) * 4 if q < 2 else OA[h] + 64 + (t - 6) * 4
        def rowsum(u, q): self.M(LACC + 4 * q, ('a', ONES), bop(u, q), None if u == 0 else LACC + 4 * q, 'a')
        def B(h, u):
            p8frag(h, u)
            for t in range(8):
                f = vfrag(t, u & 1); n = 0
                for q in range(3 if t >= 6 else 2):
                    self.M(acc(h, t, q), ('a', f), bop(u, q), None if u == 0 else acc(h, t, q)); n += 1
                if t in (1, 3, 5): rowsum(u, t >> 1); n += 1
                yield n
        def Blast(h):
            p8frag(h, 14); p8frag(h, 15)
            nh = opt.get('nh', 5)
            for t in range(nh):
                f = vfrag(t, 0)
                for q in range(2): self.M(acc(h, t, q), ('a', f), bop(14, q), acc(h, t, q))
                if t < 3: rowsum(14, t)
            for q in (2, 0, 1): rowsum(15, q)
            for t in range(8):
                us = [1] if t < nh else [0, 1]
                f = {uu: vfrag(t, uu) for uu in us}
                for q in range(3 if t >= 6 else 2):
                    for uu in (us if q != 1 else us[::-1]): self.M(acc(h, t, q), ('a', f[uu]), bop(14 + uu, q), acc(h, t, q))
        def chain(*gs):
            for g in gs: yield from g
        def q1(m, b):
            it = {m & 1: self.witem('Q1', m >> 1, m & 1, b, sp=(opt.get('sp0', 3) if m == 0 else opt.get('spw', 6)))}
            return self.pgroups('Q1', m >> 1, it, b, R1, m == 0, m == 7)
        def finish_head(h):
            e = p.nm() - (24 if h else 0)
            if h == 0: self.asm(setup_mid(), soft=e)
            for q in range(3):
                self.asm(f"v_accvgpr_read_b32 v{RCP+q}, a{LACC+4*q}\nv_subrev_u32 v{TMP+q}, s{sLo}, v{RCP+q}", soft=e)
            self.asm(f"v_max3_u32 v{TMP}, v{TMP}, v{TMP+1}, v{TMP+2}", soft=e)
            cw = p.add(Op('DW', f"ds_write_b32 v{aCK}, v{TMP}", rd=R('v', TMP) + R('v', aCK), lds_wr=[(('CK', 0), ('CK', h))], soft=e))
            sts = []; osp = opt.get('osoft', 9) if h else opt.get('osoft0', 24)
            for q in range(3):
                self.V(f"v_rcp_f32 v{RCP+q}, v{RCP+q}", R('v', RCP + q), R('v', RCP + q), kind='E')
            for s in range(4):
                for q in range(2):
                    r = OA[h] + (q * 8 + 2 * s) * 4
                    self.pack(r, r, f"v{RCP+q}")
                    self.S(f"s_add_u32 s{sT}, s{sOs+s}, {h * 36864 + q * 4096}", R('s', sOs + s), R('s', sT))
                    sts.append(self.ST(r, 4, vL16, SWS, sT, 0, 'sc1', soft=p.nm() + osp * (len(sts) + 1 - h), firm=True))
            self.pack(OA[h] + 64, OA[h] + 64, f"v{RCP+2}")
            self.S(f"s_add_u32 s{sT}, s{sOn}, {h * 36864}", R('s', sOn), R('s', sT))
            sts.append(self.ST(OA[h] + 64, 4, vL8, SWS, sT, 0, 'sc1', soft=p.nm() + osp * (9 - h), firm=True))
            self.ost = sts
            def check(b):
                b.needs.append(cw); p.dep(cw, b, 4)
                self.D(('v', TMP), aL16, CKR - X8R, [(('CK', 0), ('CK', h))], bar=b, soft=b.pin + 2, firm=True)
                self.asm(f"v_max3_u32 v{TMP}, v{TMP}, v{TMP+1}, v{TMP+2}\nv_max_u32 v{TMP}, v{TMP}, v{TMP+3}", soft=b.pin + 10, firm=True)
                c = self.V(f"v_cmp_lt_u32 vcc, s{sThr+h}, v{TMP}\n    s_cbranch_vccnz L_fail{h}", R('v', TMP) + R('s', sThr + h), [('vcc', 0)], kind='C', cost=2, soft=b.pin + 12, firm=True)
                st['fl'] = self.flag(h, sts, after=[c], lag=opt.get('flag', 40) if h else opt.get('flag0', 100))
                if h == 1:
                    self.gate1 = self.poll('o1', vFO, SWS, None, 4, 1, b.pin + opt.get('p1est', 110), after=[st['fl']], lag=opt.get('p1lag', 50))
            self.pend.append((p.nm() + 8, check))
            self.tail += f"L_fail{h}:\n" + "".join(f"    s_mov_b32 s{sThr+k}, -1\n" for k in range(h, 2)) + f"""    s_mov_b32 s{sIni}, {OOB}
    s_waitcnt vmcnt(0) lgkmcnt(0)
    s_nop 15
    s_barrier
    s_branch L_restart
"""
        self.marks.append(('P1', p.nm()))
        b = self.bar([self.q8w]); head_start(0, b); kitem(0, 0, b)
        merge(chain(A8(0, 0), A(0, 0), A(0, 1)), delayed(q1(0, b), 0), 36, 36)
        for i in range(7):
            b = self.bar([st['dw']]); vitem(0, i, b); kitem(0, i + 1, b)
            merge(chain(B(0, 2 * i), A8(0, i + 1), A(0, 2 * i + 2), B(0, 2 * i + 1), A(0, 2 * i + 3)), q1(i + 1, b), 78, 36,
                  front=(opt.get('front', 50) / 100 if i == 6 else 1.0))
        self.marks.append(('P2', p.nm()))
        b = self.bar([st['dw'], self.q8w]); vitem(0, 7, b); kitem(1, 0, b); head_start(1, b)
        run(chain(B(0, 14), A8(1, 0), A(1, 0), B(0, 15)))
        finish_head(0)
        run(A(1, 1))
        for i in range(8):
            b = self.bar([st['dw']]); vitem(1, i, b)
            if i == 0: c0 = self.poll('ini', vIR, SDBG, None, 0, 16, p.nm(), lag=150)
            if i == opt.get('o0at', 4): self.gate0 = self.poll('o0', vFO, SWS, None, 0, 1, p.nm() + 40, after=[c0, st['fl']], lag=opt.get('p0lag', 90))
            if i == opt.get('pfat', 4) and opt.get('pf', 1):
                e = p.nm() + opt.get('pfoff', 60)
                self.asm(f"v_lshrrev_b32 v{TMP}, 5, v{vL16}\nv_lshlrev_b32 v{TMP}, 10, v{TMP}\nv_and_b32 v{TMP+1}, 16, v{vL16}\nv_lshl_add_u32 v{TMP}, v{TMP+1}, 3, v{TMP}", est=e - 20, soft=e, firm=True)
                self.G(('v', vIR), 1, TMP, SWO, sPFo, 0, '', est=e, soft=e)
            if i == 7: Blast(1); break
            kitem(1, i + 1, b)
            run(chain(B(1, 2 * i), A8(1, i + 1), A(1, 2 * i + 2), B(1, 2 * i + 1), A(1, 2 * i + 3)))
        finish_head(1)
        self.asm(f"s_lshl_b32 s{sC}, s{sHG}, 6\n" + "".join(f"v_xor_b32 v{r}, s{sC}, v{r}\n" for r in list(range(aVk, aVk + 8)) + list(range(aV, aV + 8))), est=p.nm() - 120)
    def final(self):
        p = self.p
        self.marks.append(("F", p.nm()))
        fl = self.flag(2, self.pst, lag=0); fl.est = p.nm() - 1
        p.LAT_G = 0
        c = self.poll('pp', vFP, SWS, None, 8, 1, p.nm() - 1, after=[fl])
        ld = []
        for e in range(3):
            for q in range(2):
                if e == 2 and q == 0: self.S(f"s_add_u32 s{sMR}, s{sMR}, 4096", R('s', sMR), R('s', sMR))
                ld.append(self.G(('a', FB + (e * 2 + q) * 4), 4, vL16, SWS, sMR, ((e * 2 + q) & 3) * 1024, 'sc1'))
        for e in range(3):
            ld.append(self.G(('a', FB + (6 + e) * 4), 4, vL16, SWS, sM8r, (e + 1) * 1024, 'sc1'))
        for g in ld: p.dep(c, g, 0); g.soft = -1000
        rq = lambda q: R2 + (q * 8 + 6) * 4 if q < 2 else R2 + 64
        for q, e in [(0, 0), (1, 0), (0, 1), (1, 1), (0, 2), (1, 2), (2, 0), (2, 1), (2, 2)]:
            bop = ('a', FB + ((e * 2 + q) if q < 2 else 6 + e) * 4)
            self.M(rq(q), ('a', SELX), bop, rq(q)); self.M(rq(q) + 4, ('a', SELY), bop, rq(q) + 4)
        for q in range(3):
            self.pack(rq(q), rq(q), None, True)
            if q == 1: self.S(f"s_add_u32 s{sOut}, s{sOut}, 16384", R('s', sOut), R('s', sOut))
            self.ST(rq(q), 4, vOUT, SOUT, sOut if q < 2 else sO8ut, 0, self.opt.get('outflags', ''))
    def make_dma(self):
        p = self.p
        readers = {}; writers = {}
        for o in p.ops:
            for pc, c in o.lds_rd: readers.setdefault((pc, c), []).append(o)
            for r in o.wr: writers.setdefault(r, []).append(o)
        def firstm(o):
            return min(s.idx for s, _ in o.succs if s.kind == 'M' and o in s.needs)
        prev = {}
        for n, x in enumerate(self.pieces):
            x['n'] = n
            x['rd'] = list(dict.fromkeys(o for c in x['cells'] for o in readers[(c, x['content'])]))
            if x['key'] is None: x['key'] = (x['bar'].pin, 1, n)
        for x in sorted(self.pieces, key=lambda x: (x['key'], x['n'])):
            old = list(dict.fromkeys(o for c in x['cells'] if c in prev for o in readers[(c, prev[c])]))
            x['old'] = old; x['fb'] = None; av = -1
            if old:
                if old[0].private: av = max(o.est for o in old) + 8 + p.LAT_DS
                else:
                    x['fb'] = max((b for b in self.bars if b.drain & set(old)), key=lambda b: b.seq); av = x['fb'].pin
            for g in x['gate'] or (): av = max(av, g.soft + (0 if g.kind == 'C' else 40))
            x['av'] = av
            for c in x['cells']: prev[c] = x['content']
        rem = sorted(self.pieces, key=lambda x: (x['key'], x['n'])); t = -1; order = []
        while rem:
            c = [y for y in rem[:24] if y['av'] <= t]
            x = c[0] if c else min(rem[:24], key=lambda y: (y['av'], y['key'], y['n']))
            t = max(t, x['av']) + (x['sp'] if len(order) >= self.opt.get('burst', 30) else 0)
            order.append(x); rem.remove(x)
        prevL = None; cur = None
        p.fence_op = None
        for x in order:
            srd, vr, sb, lit, fl = x['src']
            imm = x['ldsoff'] - cur[1] if cur and cur[0] == x['ldsreg'] else -1
            new = []
            if not (0 <= imm < 4096) or lit - imm < 0:
                new.append(self.S(f"s_add_u32 m0, s{x['ldsreg']}, {x['ldsoff']}", [], [('m0', 0)], nofence=True))
                cur = (x['ldsreg'], x['ldsoff'], cur[2] if cur else None); imm = 0
            if cur[2] != (sb, lit - imm):
                new.append(self.S(f"s_add_u32 s{sD}, s{sb}, {lit - imm}", [], R('s', sD), nofence=True))
                cur = (cur[0], cur[1], (sb, lit - imm))
            L = Op('L', f"buffer_load_dwordx4 v{vr}, {rs('s', srd, 4)}, s{sD} offen offset:{imm} {fl} lds", rd=[('m0', 0)] + R('s', sD),
                   lds_wr=[(c, x['content']) for c in x['cells']], nofence=True)
            if order.index(x) >= self.opt.get('burst', 30): L.est = 0
            p.add(L); L.rd += R('v', vr)
            for w in x['prod']:
                for o in new + [L]: p.dep(w, o, 1)
            pv = [w for w in x['prod'] if ('v', vr) in w.wr]
            later = [w for w in writers.get(('v', vr), []) if not pv or w.seq > pv[0].seq]
            if later: p.dep(L, later[0], 1)
            if prevL is not None: p.dep(prevL[0], L, prevL[1])
            prevL = (L, x['sp'])
            if x['fb'] is not None: p.dep(x['fb'], L, 0)
            elif x['old']:
                for o in x['old']: L.needs.append(o); p.dep(o, L, p.LAT_DS)
            for g in x['gate'] or ():
                p.dep(g, L, 0 if g.kind == 'C' else 30)
                if g.kind == 'ST': L.needs.append(g)
            L.soft = x['key'][0] - 200
            if x['bar'] is not None:
                x['bar'].needs.append(L); p.dep(L, x['bar'], 0)
            else:
                for o in x['rd']: o.needs.append(L); p.dep(L, o, 0)
    def finish(self):
        assert not self.pend
        self.make_dma()
        lin = self.p.schedule()
        lin = insert_waits(lin)
        lin, nops = fix_hazards(lin)
        verify_lds(lin)
        t, res = stats(lin)
        mk = self.marks + [("end", len(res))]
        rep = [f"{n0}:{sum(res[i0:i1])}/{16*(i1-i0)}" for (n0, i0), (n1, i1) in zip(mk, mk[1:])]
        print(f"; instrs {len(lin)} mfma {len(self.p.mf)} nops {nops} est cycles {t}  " + " ".join(rep), file=sys.stderr)
        return lin

def delayed(g, n):
    yield 1000 * n + 1 if n else 4
    yield from g

def maxpass(h, scr):
    F, A0, MX, AD = scr, scr + 4, scr + 16, scr + 20
    s = f"""L_max{h}:
    s_nop 15
    v_lshrrev_b32 v{AD+4}, 4, v{vL16}
    v_and_b32 v{AD+5}, 15, v{AD+4}
    v_lshlrev_b32 v{AD+5}, 8, v{AD+5}
    v_and_b32 v{AD+6}, 16, v{AD+4}
    v_lshl_add_u32 v{AD+5}, v{AD+6}, 1, v{AD+5}
    v_lshrrev_b32 v{AD+6}, 5, v{AD+4}
    v_lshl_add_u32 v{AD+5}, v{AD+6}, 4, v{AD+5}
"""
    for k in range(4):
        s += f"    s_lshr_b32 s{sCnt}, s{sXw+k}, 4\n    v_add_u32 v{AD+k}, s{sCnt}, v{AD+5}\n"
    for q in range(3): s += f"    v_mov_b32 v{MX+q}, 0xff800000\n"
    s += f"    s_add_u32 s{sU}, s{sKV}, {h * 131072}\n    s_mov_b32 s{sCnt}, 0\nL_maxl{h}:\n"
    for k in range(4):
        s += f"    buffer_load_dwordx4 {rs('v', F, 4)}, v{AD+k}, {rs('s', SK, 4)}, s{sU} offen\n    s_waitcnt vmcnt(0)\n"
        for q in range(3):
            bop = rs('a', QFR[h](q, k) if q < 2 else QF8[h] + 4 * k, 4)
            d = rs('v', A0 + 4 * q, 4)
            s += f"    v_mfma_f32_16x16x32_bf16 {d}, {rs('v', F, 4)}, {bop}, {'0' if k == 0 else d}\n"
        s += "    s_nop 15\n"
    for q in range(3):
        a = A0 + 4 * q
        s += f"    v_max3_f32 v{MX+q}, v{MX+q}, v{a}, v{a+1}\n    v_max3_f32 v{MX+q}, v{MX+q}, v{a+2}, v{a+3}\n"
    s += f"""    s_add_u32 s{sU}, s{sU}, 4096
    s_add_u32 s{sCnt}, s{sCnt}, 1
    s_cmp_lt_u32 s{sCnt}, 32
    s_cbranch_scc1 L_maxl{h}
"""
    for q in range(3):
        for op in ("v_permlane16_swap_b32", "v_permlane32_swap_b32"):
            s += f"    v_mov_b32 v{F}, v{MX+q}\n    s_nop 1\n    {op} v{F}, v{MX+q}\n    s_nop 1\n    v_max_f32 v{MX+q}, v{F}, v{MX+q}\n"
        for i in range(4): s += f"    v_xor_b32 v{NEGM+4*q+i}, 0x80000000, v{MX+q}\n"
    s += f"    s_nop 7\n    s_branch L_maxret{h}\n"
    return s

def srd(reg, ptr, size):
    return f"    s_mov_b32 s{reg}, s{ptr}\n    s_mov_b32 s{reg+1}, s{ptr+1}\n    s_mov_b32 s{reg+2}, {size}\n    s_mov_b32 s{reg+3}, 0x20000\n"

def lane_setup():
    s = f"""    v_mbcnt_lo_u32_b32 v{vLN}, -1, 0
    v_mbcnt_hi_u32_b32 v{vLN}, -1, v{vLN}
    s_lshl_b32 s3, s{sW}, 15
    v_and_b32 v{vR}, 15, v{vLN}
    v_lshrrev_b32 v{vG}, 4, v{vLN}
    v_lshlrev_b32 v{vL16}, 4, v{vLN}
    v_xor_b32 v{TMP}, v{vR}, v{vG}
    v_lshlrev_b32 v{TMP}, 4, v{TMP}
    v_lshl_add_u32 v{TMP}, v{vG}, 10, v{TMP}        ; i*1024 + (r^i)*16
    v_add_u32 v{vX}, s3, v{TMP}
"""
    for j in range(1, 4):
        s += f"    v_xor_b32 v{vX+j}, {64*j}, v{vX}\n    v_add_u32 v{vX+j}, {3072*j}, v{vX+j}\n"
    s += f"""    s_mul_i32 s3, s{sW}, 4160
    v_xor_b32 v{vX8}, s3, v{TMP}                  ; (4w+i)*1024 + (r^(4w+i))*16
    s_lshl_b32 s3, s{sW}, 2
    v_add_u32 v{TMP+2}, s3, v{vG}                 ; 4w+i
    v_and_b32 v{TMP}, 7, v{TMP+2}
    v_lshlrev_b32 v{TMP}, 1, v{TMP}
    v_xor_b32 v{TMP}, v{vR}, v{TMP}
    v_lshlrev_b32 v{TMP}, 4, v{TMP}
    s_lshl_b32 s3, s{sW}, 4
    v_add_u32 v{TMP+3}, s3, v{vG}
    v_lshl_add_u32 v{vW}, v{TMP+3}, 13, v{TMP}
    v_lshl_add_u32 v{TMP+1}, v{vG}, 8, s{sLw}       ; w*4096 + i*256
    v_add_u32 v{vV}, v{TMP}, v{TMP+1}
    v_and_b32 v{TMP}, 0xf0, v{vX8}
    v_add_u32 v{vK}, v{TMP}, v{TMP+1}
"""
    return s

def prologue(opt):
    s = f""".globl {KNAME}
.p2align 8
.type {KNAME},@function
{KNAME}:
    s_cmp_ge_u32 s2, 256
    s_cbranch_scc1 L_exit
;STAMP
    s_load_dwordx8 s[{SX}:{SX+7}], s[0:1], 0
    s_load_dwordx8 s[{SWO}:{SWO+7}], s[0:1], 32
    v_lshrrev_b32 v1, 6, v0
    s_and_b32 s3, s2, 7
    v_readfirstlane_b32 s{sW}, v1
    s_lshr_b32 s4, s2, 3
    s_and_b32 s5, s3, 1
    s_lshl_b32 s5, s5, 3
    s_and_b32 s6, s4, 7
    s_add_u32 s{sB}, s5, s6
    s_lshr_b32 s{sHG}, s3, 1
    s_lshr_b32 s{sJ}, s4, 3
    s_lshl_b32 s5, s{sHG}, 3
    s_lshl_b32 s6, s{sJ}, 1
    s_add_u32 s{sH0}, s5, s6
    s_lshl_b32 s{sLw}, s{sW}, 12
    s_lshl_b32 s{sXw}, s{sW}, 10
    s_xor_b32 s7, s{sB}, s{sJ}
    s_and_b32 s7, s7, {opt.get('rot', 1)}
    s_mul_i32 s5, s{sB}, 147456
    s_lshl_b32 s6, s{sH0}, 8
"""
    for n in range(4):
        s += f"""    s_xor_b32 s3, s7, {n}
    s_lshl_b32 s4, s3, 8
    s_add_u32 s{sXn+n}, s5, s4
    s_lshl_b32 s4, s3, 20
    s_add_u32 s{sWQn+n}, s6, s4
"""
    s += f"""    s_mov_b32 s{sIni}, 0
    s_mov_b32 s{sThr}, {L_HI - L_LO:#x}
    s_mov_b32 s{sThr+1}, {L_HI - L_LO:#x}
""" + lane_setup() + f"""    s_waitcnt lgkmcnt(0)
""" + srd(SDBG, SWO + 4, 256) + srd(SOUT, SWO + 2, 2359296) + srd(SWS, SWO + 6, WS_SIZE) + f"""    s_mov_b32 s{SWO+2}, 4194304
    s_mov_b32 s{SWO+3}, 0x20000
""" + srd(SWQ, SX + 6, 4194304) + srd(SV, SX + 4, 67108864) + srd(SK, SX + 2, 67108864) + f"""    s_mov_b32 s{SX+2}, 2359296
    s_mov_b32 s{SX+3}, 0x20000
L_go:
"""
    return s

def prologue2(opt):
    s = f"""    ; x fragment read addresses
    v_lshlrev_b32 v{TMP}, 1, v{vG}
    v_xor_b32 v{TMP}, v{TMP}, v{vR}
    v_lshlrev_b32 v{TMP}, 4, v{TMP}
    v_lshl_add_u32 v{TMP}, v{vR}, 8, v{TMP}
    v_add_u32 v{aX8}, {X8R}, v{TMP}
    v_add_u32 v{aXo}, s{sLw}, v{TMP}
    v_add_u32 v{aXo+4}, {VR}, v{aXo}
"""
    for k in range(1, 4):
        m = (8 * (k >> 1) + (k & 1)) * 16
        s += f"    v_xor_b32 v{aX8+k}, {m}, v{aX8}\n    v_xor_b32 v{aXo+k}, {m}, v{aXo}\n    v_xor_b32 v{aXo+4+k}, {m}, v{aXo+4}\n"
    s += f"""    ; V / W read addresses: r' = r>>2, c = r&3
    v_lshrrev_b32 v{TMP+1}, 2, v{vR}
    v_and_b32 v{TMP}, 1, v{vG}
    v_lshl_add_u32 v{TMP}, v{TMP}, 2, v{TMP+1}
    v_lshlrev_b32 v{TMP}, 5, v{TMP}               ; f*16
    v_lshlrev_b32 v{TMP+3}, 12, v{vG}
    v_lshl_add_u32 v{TMP+3}, v{TMP+1}, 8, v{TMP+3}
    v_and_b32 v{TMP+2}, 3, v{vR}
    v_lshl_add_u32 v{TMP+3}, v{TMP+2}, 3, v{TMP+3}
    v_add_u32 v{TMP}, v{TMP}, v{TMP+3}
    s_lshl_b32 s4, s{sW}, 6
    v_xor_b32 v{aVk}, s4, v{TMP}
    v_add_u32 v{aV}, {VR}, v{aVk}
"""
    for t in range(1, 8):
        s += f"    v_xor_b32 v{aVk+t}, {32*t}, v{aVk}\n    v_xor_b32 v{aV+t}, {32*t}, v{aV}\n"
    s += f"""    ; clear this wave's flag line (first pass only)
    s_lshl_b32 s3, s{sB}, 2
    s_add_u32 s3, s3, s{sJ}
    s_lshl_b32 s3, s3, 2
    s_add_u32 s3, s3, s{sHG}
    s_lshl_b32 s3, s3, 2
    s_add_u32 s3, s3, s{sW}
    s_lshl_b32 s3, s3, 7
    s_add_u32 s{sFl}, s3, {WS_FL}
    s_add_u32 s3, s{sFl}, s{sIni}
    v_mov_b32 v{vZ+1}, 0
    v_and_b32 v{TMP}, 3, v{vLN}
    v_lshlrev_b32 v{TMP+1}, 2, v{TMP}
    buffer_store_dword v{vZ+1}, v{TMP+1}, {rs('s', SWS, 4)}, s3 offen sc1
"""
    if opt.get('cpf', 1):
        s += f"""    ; pull this kernel's code into L2: 4 lines per wave
    s_getpc_b64 s[4:5]
L_pc:
    s_lshr_b32 s3, s2, 3
    s_lshl_b32 s3, s3, 2
    s_add_u32 s3, s3, s{sW}
    s_lshl_b32 s3, s3, 9
    v_lshl_add_u32 v{TMP}, v{TMP}, 7, s3
    v_min_u32 v{TMP}, L_exit-L_pc, v{TMP}
    v_mov_b32 v{TMP+3}, s5
    v_add_co_u32 v{TMP+2}, vcc, s4, v{TMP}
    s_nop 1
    v_addc_co_u32 v{TMP+3}, vcc, 0, v{TMP+3}, vcc
    global_load_dword v{vZ+2}, v[{TMP+2}:{TMP+3}], off
"""
    return s

def setup_attn():
    t = SP
    s = f"""s_mov_b32 s{sC}, {CSCALE:#x}
s_mov_b32 s{sLo}, {L_LO:#x}
s_lshl_b32 s5, s{sB}, 5
s_add_u32 s5, s5, s{sH0}
s_lshl_b32 s{sKV}, s5, 17
v_mov_b32 v{ONEV}, 1
s_lshl_b32 s6, s{sB}, 4
v_mov_b32 v{vIR}, s6
v_add_u32 v{t}, s{sLw}, v{vLN}
v_lshl_add_u32 v{vZ}, v{t}, 8, s6
"""
    for i in range(1, 4): s += f"s_xor_b32 s{sXw+i}, s{sXw}, {i << 10}\n"
    s += f"""v_and_b32 v{t}, 1, v{vG}
v_lshlrev_b32 v{t}, 1, v{t}
v_lshrrev_b32 v{t+1}, 1, v{vG}
v_or_b32 v{t}, v{t}, v{t+1}
v_xor_b32 v{t}, v{t}, v{vR}
v_lshrrev_b32 v{t+1}, 2, v{vR}
v_and_b32 v{t+2}, 3, v{vR}
v_lshlrev_b32 v{t+3}, 12, v{t+1}
v_lshl_add_u32 v{t+3}, v{t+2}, 8, v{t+3}
v_lshl_add_u32 v{t}, v{t}, 4, v{t+3}
s_lshl_b32 s4, s{sW}, 6
v_xor_b32 v{aK}, s4, v{t}
v_add_u32 v{aK8}, s{sXw}, v{aK}
"""
    for k in range(1, 4): s += f"v_xor_b32 v{aK+k}, {64*k}, v{aK}\nv_xor_b32 v{aK8+k}, {64*k}, v{aK8}\n"
    for k in range(12): s += f"v_mov_b32 v{NEGM+k}, 0\n"
    s += f"""v_cmp_eq_u32 vcc, 0, v{t+2}
v_mov_b32 v{t+4}, 0x3f803f80
v_cndmask_b32 v{t+4}, v{NEGM}, v{t+4}, vcc
"""
    for k in range(4): s += f"v_accvgpr_write_b32 a{ONES+k}, v{t+4}\n"
    s += f"""v_add_u32 v{aL16}, {X8R}, v{vL16}
s_lshr_b32 s3, s{sW}, 1
s_lshl_b32 s3, s3, 10
s_and_b32 s7, s{sW}, 1
s_lshl_b32 s7, s7, 3
s_add_u32 s3, s3, s7
s_add_u32 s3, s3, {P8R}
v_add_u32 v{aP8w}, s3, v{vL16}
"""
    for k in range(4): s += f"v_add_u32 v{aQ8+k}, s{sXw+k}, v{aL16}\n"
    return s

def setup_scalar():
    s = f"""s_lshl_b32 s3, s{sB}, 2
s_add_u32 s3, s3, s{sHG}
s_mul_i32 s3, s3, {8 * 36864}
s_lshl_b32 s4, s{sW}, 13
s_add_u32 s3, s3, s4
s_lshl_b32 s5, s{sHG}, 20
s_lshl_b32 s6, s{sJ}, 8
s_add_u32 s5, s5, s6
"""
    for n in range(4):
        s += f"""s_xor_b32 s6, s{sJ}, {n}
s_mul_i32 s7, s6, 73728
s_add_u32 s{sOn+n}, s3, s7
s_lshl_b32 s7, s6, 18
s_add_u32 s{sWOn+n}, s5, s7
"""
    for i in range(4): s += f"s_add_u32 s{sOs+i}, s{sOn}, s{sXw+i}\n"
    s += f"""s_and_b32 s6, s{sB}, 7
s_lshl_b32 s6, s6, 2
s_add_u32 s6, s6, s{sW}
s_lshl_b32 s7, s6, 15
s_add_u32 s{sPFo}, s5, s7
s_lshl_b32 s3, s{sB}, 2
s_add_u32 s3, s3, s{sJ}
s_lshl_b32 s3, s3, 2
"""
    for e in range(4):
        s += f"""s_xor_b32 s4, s{sHG}, {e ^ 3}
s_add_u32 s4, s4, s3
s_lshl_b32 s4, s4, 2
s_add_u32 s4, s4, s{sW}
s_mul_i32 s4, s4, 6144
s_add_u32 s{sMB+e}, s4, {WS_MB + (e % 3) * 2048}
"""
    s += f"""s_xor_b32 s4, s{sHG}, s{sW}
s_add_u32 s4, s4, s3
s_lshl_b32 s4, s4, 12
s_add_u32 s4, s4, {WS_M8}
s_add_u32 s{sM8s}, s4, s{sXw}
s_cmp_eq_u32 s{sW}, 0
s_cselect_b32 s{sM8r}, s4, {OOB}
s_mul_i32 s4, s{sB}, 147456
s_lshl_b32 s5, s{sJ}, 8
s_add_u32 s4, s4, s5
s_xor_b32 s5, s{sHG}, s{sW}
s_xor_b32 s6, s5, 3
s_lshl_b32 s6, s6, 6
s_lshl_b32 s7, s{sW}, 15
s_add_u32 s6, s6, s7
s_add_u32 s{sOut}, s4, s6
s_lshl_b32 s5, s5, 6
s_add_u32 s4, s4, s5
s_add_u32 s4, s4, 131072
s_cmp_eq_u32 s{sW}, 0
s_cselect_b32 s{sO8ut}, s4, {OOB}
"""
    return s

def setup_mid():
    return f"""s_lshl_b32 s3, s{sW}, 2
s_add_u32 s4, s3, {CKR}
v_add_u32 v{aCK}, s4, v{vL16}
s_lshl_b32 s5, s{sW}, 13
s_sub_u32 s5, 32768, s5
s_add_u32 s5, s5, s{sXw+3}
v_add_u32 v{vL8}, s5, v{vL16}
v_lshlrev_b32 v{vFW}, 21, v{vL16}
v_and_b32 v{vFO}, 48, v{vL16}
s_and_b32 s6, s{sFl}, {0xffffffff ^ (3 << 11):#x}
v_lshl_add_u32 v{vFO}, v{vFO}, 7, s6
v_bfe_u32 v{vW}, v{vV}, 8, 2
v_add_u32 v{vW}, s3, v{vW}
v_and_b32 v{vF}, 0xf0, v{vV}
v_lshl_add_u32 v{vW}, v{vW}, 10, v{vF}
"""

def setup_final():
    t = vT
    return f"""v_bfe_u32 v{t}, v{vL16}, 4, 2
s_and_b32 s3, s{sFl}, {0xffffffff ^ (3 << 9):#x}
v_lshl_add_u32 v{t+1}, v{t}, 9, s3
v_mul_u32_u24 v{t+2}, 640, v{t}
v_xor_b32 v{t+2}, s{sFl}, v{t+2}
s_cmp_eq_u32 s{sW}, 0
s_cselect_b32 s4, 64, 0
v_and_b32 v{t+3}, s4, v{vL16}
v_cmp_ne_u32 vcc, 0, v{t+3}
v_cndmask_b32 v{vFP}, v{t+1}, v{t+2}, vcc
v_bfe_u32 v{t+4}, v{vL16}, 4, 4
v_lshlrev_b32 v{vOUT}, 10, v{t+4}
v_bfe_u32 v{t+5}, v{vL16}, 8, 1
v_lshl_add_u32 v{vOUT}, v{t+5}, 5, v{vOUT}
v_bfe_u32 v{t+5}, v{vL16}, 9, 1
v_lshl_add_u32 v{vOUT}, v{t+5}, 4, v{vOUT}
v_mov_b32 v{t+6}, 0
v_lshrrev_b32 v{t+4}, 2, v{t+4}
v_lshrrev_b32 v{t+5}, 8, v{vL16}
v_and_b32 v{t+7}, 16, v{vL16}
v_mov_b32 v{t+8}, 0x3f80
v_lshlrev_b32 v{t+7}, v{t+7}, v{t+8}
v_cmp_eq_u32 vcc, v{t+4}, v{t+5}
v_cndmask_b32 v{t+7}, v{t+6}, v{t+7}, vcc
v_cmp_gt_u32 vcc, 2, v{t}
v_cndmask_b32 v{t+8}, v{t+6}, v{t+7}, vcc
v_cndmask_b32 v{t+7}, v{t+7}, v{t+6}, vcc
v_accvgpr_write_b32 a{SELX}, v{t+8}
v_accvgpr_write_b32 a{SELX+1}, v{t+7}
v_accvgpr_write_b32 a{SELX+2}, 0
v_accvgpr_write_b32 a{SELX+3}, 0
v_accvgpr_write_b32 a{SELY}, 0
v_accvgpr_write_b32 a{SELY+1}, 0
v_accvgpr_write_b32 a{SELY+2}, v{t+8}
v_accvgpr_write_b32 a{SELY+3}, v{t+7}
"""

def emit(g, lin, opt):
    st = opt.get('stamps')
    n = [0]
    def stamp():
        k = n[0]; n[0] += 1
        a = 88 + 4 * (k & 1); b = 88 + 4 * ((k + 1) & 1)
        t = f"    s_memrealtime s[{a}:{a+1}]\n    s_memtime s[{a+2}:{a+3}]\n"
        if k > 0: t += f"    v_writelane_b32 v{STA}, s{b}, {k-1}\n    v_writelane_b32 v{STB}, s{b+2}, {k-1}\n"
        return t
    W = "    s_waitcnt lgkmcnt(0)\n"
    s = prologue(opt)
    if st: s = s.replace(";STAMP\n", stamp()) + stamp()
    done2 = False; nl = 0
    for o in lin:
        if not done2 and (o.kind not in ('L', 'S', 'N') or nl >= opt.get('p2at', 10)):
            s += prologue2(opt); done2 = True
        nl += o.kind == 'L'
        txt = o.text
        if opt.get('kvsame') and txt.startswith(f"s_lshl_b32 s{sKV},"): txt = f"s_mov_b32 s{sKV}, 0"
        s += (txt if o.kind == 'X' else "    " + txt) + "\n"
        if st and (o.kind == 'B' or 'L_ret_o1' in txt): s += stamp()
        if st and ('offset:8 sc1' in txt and o.kind == 'ST' or 'L_ret_pp' in txt): s += W + stamp()
    if st:
        s += W + stamp() + "    s_waitcnt vmcnt(0) lgkmcnt(0)\n" + stamp() + W + stamp()
        s += f"""    s_lshl_b32 s3, s2, 2
    s_add_u32 s3, s3, s{sW}
    s_lshl_b32 s3, s3, 9
    s_add_u32 s3, s3, 0x3000000
    s_mov_b32 s{SWS+2}, 0x4000000
    v_lshrrev_b32 v1, 2, v{vL16}
    buffer_store_dword v{STA}, v1, s[{SWS}:{SWS+3}], s3 offen
    buffer_store_dword v{STB}, v1, s[{SWS}:{SWS+3}], s3 offen offset:256
"""
        print("; stamps", n[0] - 1, file=sys.stderr)
        if opt.get('dbgwg') is not None:
            s += f"""    s_cmp_lg_u32 s2, {opt['dbgwg']}
    s_cbranch_scc1 L_exit
    s_cmp_lg_u32 s{sW}, 0
    s_cbranch_scc1 L_exit
    v_readlane_b32 s3, v{STA}, 0
    v_lshrrev_b32 v1, 1, v1
    v_subrev_u32 v1, {2 * opt.get('dbgoff', 0)}, v1
    s_mov_b32 s{SDBG+2}, 64
    s_nop 3
    v_subrev_u32 v{STA}, s3, v{STA}
    buffer_store_short v{STA}, v1, s[{SDBG}:{SDBG+3}], 0 offen
"""
    s += "    s_endpgm\n" + g.tail + "L_restart:\n" + lane_setup() + "    s_branch L_go\nL_exit:\n    s_endpgm\n"
    return s

def build(opt):
    g = Gen(opt)
    g.q0(); g.attention(); o1 = g.ost
    g.wstage('W0', [g.gate0], [g.gate0])
    g.wstage('W1', [g.gate1], o1)
    g.final()
    body = emit(g, g.finish(), opt)
    s = "; fused MHA block: Q projection, attention, output projection and reduction in one launch\n"
    s += "; @launch grid=(256,1,1) block=(256,1,1) lds=163840\n"
    s += '.amdgcn_target "amdgcn-amd-amdhsa--gfx950"\n.text\n' + body
    s += f""".section .rodata,"a"
.p2align 6
.amdhsa_kernel {KNAME}
  .amdhsa_next_free_vgpr 512
  .amdhsa_next_free_sgpr 102
  .amdhsa_accum_offset 256
  .amdhsa_group_segment_fixed_size 0
  .amdhsa_kernarg_size 64
  .amdhsa_user_sgpr_count 2
  .amdhsa_user_sgpr_kernarg_segment_ptr 1
  .amdhsa_system_sgpr_workgroup_id_x 1
.end_amdhsa_kernel
"""
    return s

if __name__ == "__main__":
    opt = {}
    out = sys.argv[1]
    for a in sys.argv[2:]:
        k, v = a.split("=")
        opt[k] = int(v) if v.lstrip('-').isdigit() else v.replace('+', ' ')
    open(out, "w").write(build(opt))
```

```python
import re

def R(f, a, n=1):
    return [(f, a + i) for i in range(n)]
def rs(f, a, n=1):
    return f"{f}{a}" if n == 1 else f"{f}[{a}:{a+n-1}]"

ASYNC_LGKM = ('DS', 'DW')
ASYNC_VM = ('L', 'G', 'ST')
VALU = ('E', 'V', 'P', 'C')

class Op:
    n = 0
    def __init__(self, kind, text, rd=(), wr=(), **kw):
        self.kind, self.text, self.rd, self.wr = kind, text, list(rd), list(wr)
        self.preds = []
        self.succs = []
        self.needs = []
        self.est = kw.get('est', -1)
        self.pin = kw.get('pin')
        self.lst = None
        self.gap = None
        self.idx = None
        self.tag = kw.get('tag')
        self.lds_rd = kw.get('lds_rd', [])
        self.lds_wr = kw.get('lds_wr', [])
        self.private = kw.get('private', False)
        self.nofence = kw.get('nofence', False)
        self.soft = kw.get('soft')
        self.cost = kw.get('cost')
        self.firm = kw.get('firm', False)
        Op.n += 1
        self.seq = Op.n

class Prog:
    LAT_DS = 6
    LAT_G = 40
    WIN = 3
    ALT = 1
    TTW = 2
    VSP = 0.5
    DSP = 1.0
    OVF = 1
    OVN = 1
    VMW = 3
    ESP = 1.5
    LDSCAP = 3
    def __init__(self):
        self.ops = []
        self.mf = []
        self.lastw = {}
        self.readers = {}
        self.fence_op = None
    def nm(self):
        return len(self.mf)
    def dep(self, a, b, dist):
        if a is b: return
        b.preds.append((a, dist)); a.succs.append((b, dist))
    def _dist(self, a, b, raw):
        if a.kind == 'M' and b.kind == 'M': return 1
        if raw:
            if a.kind == 'DS': return self.LAT_DS
            if a.kind == 'G': return self.LAT_G
            if a.kind == 'M': return 4
            if b.kind == 'M': return 2
            if a.kind == 'E': return 1
            if b.kind == 'P': return 1
            if a.kind == 'S' and b.kind == 'L': return 1
            return 0
        if a.kind == 'M':
            return 0 if b.kind in ('DS', 'G') else 2
        if b.kind == 'M': return 1
        if a.kind in ('ST', 'L', 'G'): return 1
        return 0
    def add(self, op):
        for r in op.rd:
            w = self.lastw.get(r)
            if w is not None:
                self.dep(w, op, self._dist(w, op, True))
                if w.kind in ('DS', 'G') and w not in op.needs: op.needs.append(w)
        for r in op.wr:
            w = self.lastw.get(r)
            if w is not None:
                d = self._dist(w, op, False)
                if w.kind == 'M' and op.kind != 'M': d = 4
                self.dep(w, op, d)
                if w.kind in ('DS', 'G') and w.kind != op.kind and w not in op.needs: op.needs.append(w)
            for q in self.readers.get(r, ()):
                self.dep(q, op, self._dist(q, op, False))
        for r in op.rd:
            self.readers.setdefault(r, []).append(op)
        for r in op.wr:
            self.lastw[r] = op
            self.readers[r] = []
        if op.kind == 'M':
            op.idx = len(self.mf); self.mf.append(op)
        if self.fence_op is not None and not op.nofence and op.kind != 'M':
            self.dep(self.fence_op, op, 0)
        self.ops.append(op)
        return op
    def fence(self, text, kind='X'):
        f = Op(kind, text, pin=self.nm() - 1)
        for o in self.ops:
            if not o.nofence and o.kind != 'M': self.dep(o, f, 0)
        self.ops.append(f)
        self.fence_op = f
        return f

    def schedule(self):
        N = len(self.mf)
        BIG = N + 10
        indeg = {o: len(o.preds) for o in self.ops}
        topo = [o for o in self.ops if indeg[o] == 0]
        i = 0
        while i < len(topo):
            for s, _ in topo[i].succs:
                indeg[s] -= 1
                if indeg[s] == 0: topo.append(s)
            i += 1
        if len(topo) != len(self.ops):
            rem = set(self.ops) - set(topo)
            o = min(rem, key=lambda x: x.seq); path = []
            while o not in path:
                path.append(o); o = next(p for p, _ in o.preds if p in rem)
            for x in path[path.index(o):]: print("CYCLE", x.seq, x.kind, x.pin, x.idx, x.text[:90], x.lds_wr[:1])
            raise Exception("dependency cycle")
        hard = {}
        for o in reversed(topo):
            if o.kind == 'M':
                o.lst = o.due = o.idx; hard[o] = o.idx - 1; continue
            l = BIG; h = N - 1; du = BIG
            for s, d in o.succs:
                l = min(l, s.lst - d); h = min(h, hard[s]); du = min(du, s.due - d)
            if o.pin is not None:
                assert o.pin <= h, ("pinned op too late", o.text, o.pin, h)
                l = o.pin; h = o.pin; du = o.pin
            if o.soft is not None:
                l = min(l, o.soft)
                if o.firm: du = min(du, o.soft)
            o.lst = l; hard[o] = h; o.due = du
        es = sorted([o for o in self.ops if o.kind == 'E'], key=lambda o: (-o.lst, -o.seq))
        for x, y in zip(es, es[1:]):
            y.lst = min(y.lst, x.lst - self.ESP)
        es.sort(key=lambda o: (-o.due, -o.seq))
        for x, y in zip(es, es[1:]):
            y.due = min(y.due, x.due - self.ESP)
        vs = sorted([o for o in self.ops if o.kind in ('V', 'P') and o.firm != 2], key=lambda o: (-o.due, -o.seq))
        for x, y in zip(vs, vs[1:]):
            y.due = min(y.due, x.due - self.VSP); y.lst = min(y.lst, y.due)
        ds = sorted([o for o in self.ops if o.kind == 'DS'], key=lambda o: (-o.due, -o.seq))
        for x, y in zip(ds, ds[1:]):
            y.due = min(y.due, x.due - self.DSP); y.lst = min(y.lst, y.due)
        for o in self.ops:
            if o.kind == 'DS' and not o.private and self.WIN is not None:
                if o.soft is None: o.est = max(o.est, int(o.due) - self.WIN)
        seen = set(); waitgap = set()
        for m in self.mf:
            nw = [w for w in m.needs if w not in seen]
            if nw: waitgap.add(m.idx - 1); seen.update(nw)
        fill = [o for o in self.ops if o.kind != 'M']
        byhard = {}
        for o in fill: byhard.setdefault(hard[o], []).append(o)
        npl = {o: sum(1 for p, _ in o.preds if p.kind != 'M') for o in fill}
        ready = set(o for o in fill if npl[o] == 0)
        def est(o):
            e = o.est
            for p, d in o.preds:
                e = max(e, (p.idx if p.kind == 'M' else p.gap) + d)
            if o.pin is not None: e = max(e, o.pin)
            return e
        def hest(o):
            return max([p.idx for p, _ in o.preds if p.kind == 'M'] + [-1])
        estc = {o: est(o) for o in ready}
        gaps = {g: [] for g in range(-1, N)}
        def place(o, g):
            assert hest(o) <= g, ("forced before its MFMA producer", o.text, g, hest(o))
            o.gap = g; gaps[g].append(o); ready.discard(o)
            for s, _ in o.succs:
                if s.kind != 'M':
                    npl[s] -= 1
                    if npl[s] == 0:
                        ready.add(s); estc[s] = est(s)
        def force(o, g):
            if o.gap is not None: return
            for p, _ in sorted(o.preds, key=lambda x: x[0].seq):
                if p.kind != 'M' and p.gap is None: force(p, g)
            place(o, g)
        ldsw = lambda o: (2 if 'b128' in o.text else 1) if o.kind in ASYNC_LGKM else 0
        cost = lambda o: o.cost if o.cost is not None else (2 if o.kind in ('E', 'L', 'G', 'ST') else (0 if o.kind == 'X' else 1))
        for g in range(-1, N):
            if g == -1:
                while True:
                    c = sorted([o for o in ready if estc[o] <= -1 or (o.est <= -1 and hest(o) <= -1 and o.kind in ('L', 'S', 'G') and o.pin is None)], key=lambda o: (o.lst, o.seq))
                    c = [o for o in c if o.kind in ('L', 'S') and o.nofence]
                    if not c: break
                    place(c[0], g)
            for o in sorted(byhard.get(g, []), key=lambda o: o.seq): force(o, g)
            if g == -1: continue
            scal = lambda o: o.kind in ('S', 'B')
            cap = 2 - sum(cost(o) for o in gaps[g] if not scal(o))
            ns = sum((2 if o.kind == 'B' else 1) for o in gaps[g] if scal(o)) + (1 if g in waitgap else 0)
            if ns > 1: cap -= ns - 1
            extra = 0
            while True:
                c = sorted([o for o in ready if estc[o] <= g and o.pin is None], key=lambda o: (o.lst, o.seq))
                hasv = any(o.kind in VALU for o in gaps[g])
                c = [o for o in c if o.kind in VALU or scal(o) or not (hasv and any(p.gap == g and p.kind in VALU for p, _ in o.preds))]
                ldsu = sum(ldsw(o) for o in gaps[g])
                cs = [o for o in c if scal(o)]
                cm = [o for o in c if o.kind in ASYNC_VM]
                ce = [o for o in c if cost(o) >= 2 and o.kind in VALU]
                cd = [o for o in c if ldsw(o)]
                cv = [o for o in c if o.kind in VALU and cost(o) == 1]
                pick = None
                if cs and (ns < 1 or (cap >= 1 and cs[0].lst <= g and estc[cs[0]] + 2 <= g)): pick = cs[0]
                elif cap == 2 and cm and cm[0].lst <= g + self.VMW and not (any(o.kind in ASYNC_VM for o in gaps[g - 1]) and estc[cm[0]] + 3 > g): pick = cm[0]
                elif cap == 2:
                    dd = cd and cd[0].due <= g; de = ce and ce[0].due <= g; dv = cv and min(o.due for o in cv) <= g
                    pair = (cd and cv) or len(cv) >= 2 or (len(cd) >= 2 and cd[1].lst <= g + self.TTW)
                    if de and not (dd and cd[0].due < ce[0].due): pick = ce[0]
                    elif dd: pick = cd[0]
                    elif dv: pick = min(cv, key=lambda o: (o.due, o.seq))
                    elif ce and (ce[0].lst <= g or not pair): pick = ce[0]
                    elif cd: pick = cd[0]
                    elif cv: pick = cv[0]
                    elif cm: pick = cm[0]
                elif cap == 1:
                    fit = [o for o in cd if ldsu + ldsw(o) <= self.LDSCAP]
                    dvs = [o for o in cv if o.due <= g]
                    if ldsu == 0 and cd: pick = cd[0]
                    elif fit and fit[0].due <= g and not (dvs and min(o.due for o in dvs) <= fit[0].due): pick = fit[0]
                    elif dvs: pick = min(dvs, key=lambda o: (o.due, o.seq))
                    elif cv: pick = cv[0]
                    elif fit and fit[0].lst <= g + self.TTW: pick = fit[0]
                if pick is None and extra < self.OVN:
                    late = [o for o in cd + cv + ce if o.due + self.OVF + (0 if extra == 0 else 2) <= g and (extra == 0 or o.firm)]
                    if late: pick = min(late, key=lambda o: (o.due, o.seq)); extra += 1
                if pick is None: break
                if scal(pick):
                    if ns >= 1: cap -= 1
                    ns += 1
                else: cap -= cost(pick)
                place(pick, g)
        assert all(o.gap is not None for o in fill)
        out = []
        cls = lambda o: 0 if o.kind in ('S', 'B', 'X') else (2 if o.kind in VALU else 1)
        for g in range(-1, N):
            if g >= 0: out.append(self.mf[g])
            l = gaps[g]
            pos = {o: i for i, o in enumerate(l)}
            done = set(); rem = list(l)
            big = len(l) > 4
            while rem:
                c = [o for o in rem if all((p not in pos) or (p in done) for p, _ in o.preds)]
                o = min(c, key=(lambda o: pos[o]) if big else (lambda o: (cls(o), pos[o])))
                out.append(o); done.add(o); rem.remove(o)
        self.gaps = gaps
        return out

def insert_waits(lin):
    pos = {o: i for i, o in enumerate(lin)}
    want = {}
    lastm = None
    for i, o in enumerate(lin):
        if o.needs:
            at = i
            if o.kind == 'M' and lastm is not None and all(pos[w] < lastm for w in o.needs):
                at = lastm + 1
            want.setdefault(at, []).extend(o.needs)
        if o.kind == 'M': lastm = i
    out = []; lq = []; vq = []
    for i, o in enumerate(lin):
        if i in want:
            ln = vn = None
            for w in want[i]:
                assert pos[w] < i, ("need before issue", w.text, o.text)
                if w in lq:
                    k = len(lq) - 1 - lq.index(w); ln = k if ln is None else min(ln, k)
                if w in vq:
                    k = len(vq) - 1 - vq.index(w); vn = k if vn is None else min(vn, k)
            t = []
            if vn is not None:
                vn = min(vn, 63); t.append(f"vmcnt({vn})"); done_v = vq[:len(vq) - vn]; vq = vq[len(vq) - vn:]
            else: done_v = []
            if ln is not None:
                ln = min(ln, 15); t.append(f"lgkmcnt({ln})"); done_l = lq[:len(lq) - ln]; lq = lq[len(lq) - ln:]
            else: done_l = []
            if t:
                w = Op('W', "s_waitcnt " + " ".join(t)); w.done = done_v + done_l
                out.append(w)
        out.append(o)
        if o.kind in ASYNC_LGKM: lq.append(o)
        if o.kind in ASYNC_VM: vq.append(o)
    return out

def fix_hazards(lin):
    out = []
    def states(o):
        if o.kind == 'X': return 0
        m = re.match(r"s_nop (\d+)", o.text)
        return int(m.group(1)) + 1 if m else 1
    nops = 0
    for o in lin:
        need = 0; dist = 0
        rd, wr = set(o.rd), set(o.wr)
        for p in reversed(out):
            if dist >= 9: break
            pw, pr = set(p.wr), set(p.rd)
            req = 0
            if p.kind == 'M':
                if o.kind == 'M':
                    if pw & set(o.ab): req = 8
                    elif pw & set(o.c) and set(o.c) != pw: req = 6
                elif pw & (rd | wr): req = 8
                elif o.kind in VALU and set(p.c) & wr: req = 3
            elif p.kind in VALU:
                if o.kind == 'M' and pw & rd: req = 2
                if o.kind == 'P' and pw & rd: req = 2
                if p.kind == 'E' and o.kind != 'E' and pw & rd: req = max(req, 1)
                sw = {r for r in pw if r[0] in ('s', 'vcc')}
                if sw & rd:
                    req = max(req, 5 if o.kind in ASYNC_VM else 2)
                if 'readfirstlane' in o.text and pw & rd: req = max(req, 1)
            elif p.kind == 'ST' and pr & wr: req = 2
            elif p.kind == 'S' and ('m0', 0) in pw and o.kind == 'L': req = 1
            need = max(need, req - dist)
            dist += states(p)
        if need > 0:
            out.append(Op('N', f"s_nop {need-1}")); nops += need
        out.append(o)
    return out, nops

def verify_lds(lin):
    done_at = {}; bars = []
    for i, o in enumerate(lin):
        if o.kind == 'W':
            for w in o.done: done_at[w] = i
        if o.kind == 'B': bars.append(i)
    def ok(a, i, private):
        d = done_at.get(a)
        if d is None or d > i: return False
        return private or any(d < b < i for b in bars)
    lastw = {}; rds = {}
    for i, o in enumerate(lin):
        for p, want in o.lds_rd:
            w = lastw.get(p)
            assert w is not None, ("read of unwritten LDS", p, o.text)
            assert w[1] == want, ("wrong content", p, want, w[1], o.text)
            assert ok(w[0], i, o.private), ("RAW not covered", p, want, o.text)
            rds.setdefault(p, []).append(o)
        for p, what in o.lds_wr:
            for r in rds.get(p, []):
                assert ok(r, i, r.private), ("WAR not covered", p, what, r.text, o.text)
            rds[p] = []
            lastw[p] = (o, what)

def stats(lin):
    t = 0; prev = None; gapstart = None; res = []
    for o in lin:
        if o.kind == 'X': continue
        if o.kind == 'M':
            if gapstart is not None:
                t = max(t, gapstart + 16)
                res.append(t - gapstart)
            gapstart = t; t += 4
        elif o.kind in ('S', 'W', 'B', 'N'):
            m = re.match(r"s_nop (\d+)", o.text)
            t += 4 * (1 + o.text.count("\n    s_")) + (int(m.group(1)) if m else 0) + (12 if o.kind == 'B' else 0)
        else:
            if gapstart is not None: t = max(t, gapstart + 8)
            if o.kind not in VALU and prev is not None and prev.kind in VALU: t += 8
            if o.kind in ASYNC_LGKM and prev is not None and prev.kind in ASYNC_LGKM: t += 3
            t += 8 if o.kind in ('E', 'L', 'G', 'ST', 'C') else 4
        prev = o
    return t, res
```

```python
import sys, math, struct, re, bisect
from sched import *

KNAME = "standalone__mha_block_cached__near_ridge_kernel"
f2u = lambda x: struct.unpack("<I", struct.pack("<f", x))[0]
R1, R2, SP, NEGM = 4, 76, 148, 202
aK, aK8, aV, aVk, aX8 = 214, 218, 222, 230, 238
aL16, aP8w, vK, vV, vW, vL16, TMP, aQ8 = 242, 243, 244, 245, 246, 247, 248, 252
STA, STB = 2, 3
RCP, aCK = aX8, aX8 + 3
vL8, vFW, vF, vFO = aQ8, aQ8 + 1, aQ8 + 2, aQ8 + 3
ONEV, vIR = 0, 1
vX, aXo, vX8, vLN, vR, vG, vZ = R2, R2 + 4, R2 + 12, R2 + 13, R2 + 14, R2 + 15, R2 + 16
aWO, aO8 = SP, aK
vFP, vOUT, vT = SP + 36, SP + 37, SP + 40
XF, FB, NFB, QF0, QF80, P8F, X8B, ONES, LACC = 0, 128, 12, 176, 208, 224, 232, 240, 244
QFR = [lambda q, s: QF0 + (q * 4 + s) * 4, lambda q, s: q * 64 + s * 4]
QF8 = [QF80, 16]
WXB = [(32, 48), (80, 96), (112, 208), (176, 192)]
SELX, SELY = 64, 68
SX, SK, SV, SWQ, SWO, SWS, SOUT, SDBG = 8, 12, 16, 20, 24, 28, 32, 84
sW, sB, sH0, sLw, sKV, sIni, sC, sD, sT, sHG, sJ, sFl = 36, 37, 38, 39, 40, 41, 42, 43, 44, 45, 46, 47
sOs, sXn, sWQn, sWOn, sOn = 48, 52, 56, 60, 64
sMB, sMR, sM8s, sM8r, sOut, sO8ut, sThr, sLo, sCnt, sPFo, sT2, sU, sW10 = 68, 71, 72, 73, 74, 75, 76, 78, 79, 96, 97, 98, 99
sXw = 80
KR, VR, X8R, MISC = 0, 65536, 131072, 147456
P8R, Q8R, CKR = MISC, MISC + 4096, MISC + 8192
WS_MB, WS_M8, WS_FL, WS_SIZE = 0x1400000, 0x1C00000, 0x1F00000, 0x2000000
OOB = 0x7f000000
CSCALE = f2u(math.log2(math.e) / math.sqrt(128.0))
L_LO, L_HI = f2u(2.0 ** -12), f2u(2.0 ** 30)

def regs_of(tok):
    tok = tok.strip()
    m = re.fullmatch(r"([vas])(\d+)", tok)
    if m: return R(m.group(1), int(m.group(2)))
    m = re.fullmatch(r"([vas])\[(\d+):(\d+)\]", tok)
    if m: return R(m.group(1), int(m.group(2)), int(m.group(3)) - int(m.group(2)) + 1)
    return [('vcc', 0)] if tok == 'vcc' else []

def merge(a, b, na, nb, front=1.0):
    ca = cb = 0; da = db = False
    while not (da and db):
        if not db and (da or cb * na * front <= ca * nb):
            try: cb += next(b)
            except StopIteration: db = True
        else:
            try: ca += next(a)
            except StopIteration: da = True

def run(g):
    for _ in g: pass

class Gen:
    def __init__(self, opt, tmap=None):
        self.p = p = Prog(); self.opt = opt; self.tmap = tmap; self.vm = []
        self.F = opt.get('F', 132); self.FS = opt.get('FS', 125); self.HIT = opt.get('HIT', 42); self.SHM = opt.get('SHM', 70)
        p.LAT_DS = opt.get('lat', 6); p.WIN = opt.get('win', 4); p.ESP = opt.get('esp', 20) / 10
        p.LDSCAP = opt.get('ldscap', 3); p.TTW = opt.get('ttw', 2); p.LAT_G = opt.get('latg', 70)
        p.VMW = opt.get('vmw', 60); p.DSP = opt.get('dsp', 10) / 10; p.VSP = opt.get('vsp', 5) / 10; p.OVF = opt.get('ovf', 1); p.OVN = opt.get('ovn', 1)
        self.fb = 0; self.pieces = []; self.bars = []; self.slotseq = {'K': 0, 'V': 0}
        self.ring_rd = []; self.marks = []; self.tail = ""; self.pend = []; self.o8w = {}; self.gate = {}; self.fl = {}; self.late = []; self.miss = []
    def M(self, d, a, b, c, f='v'):
        o = Op('M', f"v_mfma_f32_16x16x32_bf16 {rs(f, d, 4)}, {rs(a[0], a[1], 4)}, {rs(b[0], b[1], 4)}, " + ("0" if c is None else rs(f, c, 4)),
               rd=R(*a, 4) + R(*b, 4) + ([] if c is None else R(f, c, 4)), wr=R(f, d, 4))
        o.ab = R(*a, 4) + R(*b, 4); o.c = [] if c is None else R(f, c, 4)
        return self.p.add(o)
    def D(self, dst, areg, off, lds, bar=None, **kw):
        o = Op('DS', f"ds_read_b128 {rs(dst[0], dst[1], 4)}, v{areg} offset:{off}", rd=R('v', areg), wr=R(*dst, 4), lds_rd=lds, **kw)
        self.p.add(o)
        if bar: self.p.dep(bar, o, 0); self.ring_rd.append(o)
        return o
    def T(self, dst, areg, off, lds, bar):
        o = Op('DS', f"ds_read_b64_tr_b16 {rs('a', dst, 2)}, v{areg} offset:{off}", rd=R('v', areg), wr=R('a', dst, 2), lds_rd=lds)
        self.p.add(o); self.p.dep(bar, o, 0); self.ring_rd.append(o)
        return o
    def V(self, text, rd, wr, kind='V', **kw):
        return self.p.add(Op(kind, text, rd=rd, wr=wr, **kw))
    def S(self, text, rd, wr, **kw):
        return self.p.add(Op('S', text, rd=rd, wr=wr, **kw))
    def asm(self, text, **kw):
        lines = [l.split(';')[0].strip() for l in text.split('\n')]
        lines = [l for l in lines if l]; i = 0; last = None
        while i < len(lines):
            l = lines[i]; mn, rest = l.split(None, 1); t = rest.split(',')
            if mn.startswith('s_cmp'):
                t2 = lines[i + 1].split(None, 1)[1].split(',')
                last = self.S(l + "\n    " + lines[i + 1], sum((regs_of(x) for x in t + t2[1:]), []), regs_of(t2[0]), **kw); i += 2; continue
            if mn.startswith('v_cmp'):
                txt = l + "\n    s_nop 1"; rd = sum((regs_of(x) for x in t[1:]), []); wr = []; i += 1
                while i < len(lines) and lines[i].startswith('v_cndmask'):
                    t2 = lines[i].split(None, 1)[1].split(',')
                    txt += "\n    " + lines[i]; rd += sum((regs_of(x) for x in t2[1:3]), []); wr += regs_of(t2[0]); i += 1
                last = self.V(txt, rd, wr, kind='C', cost=2, **kw); continue
            last = self.p.add(Op('S' if mn[0] == 's' else 'V', l, rd=sum((regs_of(x) for x in t[1:]), []), wr=regs_of(t[0]), **kw)); i += 1
        return last
    def G(self, dst, n, vreg, srd, soff, imm, flags, **kw):
        w = {1: "dword", 4: "dwordx4"}[n]
        so = f"s{soff}" if soff is not None else "0"
        return self.p.add(Op('G', f"buffer_load_{w} {rs(dst[0], dst[1], n)}, v{vreg}, {rs('s', srd, 4)}, {so} offen offset:{imm} {flags}",
                             rd=R('v', vreg) + ([] if soff is None else R('s', soff)), wr=R(*dst, n), **kw))
    def ST(self, reg, n, vreg, srd, soff, imm, flags, **kw):
        w = {1: "dword", 4: "dwordx4"}[n]
        return self.p.add(Op('ST', f"buffer_store_{w} {rs('v', reg, n)}, v{vreg}, {rs('s', srd, 4)}, s{soff} offen offset:{imm} {flags}",
                             rd=R('v', reg, n) + R('v', vreg) + R('s', soff), **kw))
    def bar(self, need=()):
        pin = max(self.p.nm() - self.opt.get('lead', 9), -1)
        o = Op('B', "s_barrier", pin=pin)
        self.p.add(o)
        o.drain = set(self.ring_rd); self.ring_rd = []
        for r in list(o.drain) + list(need): o.needs.append(r); self.p.dep(r, o, self.opt.get('drain', 4))
        if self.bars: self.p.dep(self.bars[-1], o, 0)
        self.bars.append(o)
        for minpin, fn in list(self.pend):
            if pin >= minpin: self.pend.remove((minpin, fn)); fn(o)
        return o
    def nextfb(self):
        r = FB + 4 * self.fb; self.fb = (self.fb + 1) % NFB; return r
    def slot(self, part):
        s = [3, 1, 2, 0][self.slotseq[part] % 4]; self.slotseq[part] += 1; return s
    def piece(self, cells, content, ldsreg, ldsoff, src, bar, cost, key=None, gate=None):
        prod = [self.p.lastw.get(r) for r in (('v', src[1]), ('s', src[2]), ('s', ldsreg))]
        x = dict(cells=cells, content=content, ldsreg=ldsreg, ldsoff=ldsoff, src=src, bar=bar, key=key, gate=gate, cost=cost,
                 prod=[x for x in prod if x is not None], op=None, after=[(gate, 0)] if gate else [], chain=None)
        self.pieces.append(x); self.vm.append(x)
    def item(self, part, sl, content, bar, src, cost, key=None):
        for j in range(4):
            self.piece([(part, sl, j)], content, sLw, (KR if part == 'K' else VR) + sl * 16384 + j * 1024, src(j), bar, cost, key)
    def plan(self, op, av, need, cost, after=(), chain=None, lead=None, pre=None):
        x = dict(op=op, av=av, need=need, cost=cost, after=list(after), chain=chain, lead=lead, pre=pre)
        self.vm.append(x); return x
    def poll(self, name, vreg, srd, soff, imm, want, after=()):
        lat = self.p.LAT_G; self.p.LAT_G = 0
        cmp = "v_cmp_gt_u32" if want > 1 else "v_cmp_ne_u32"
        g = self.G(('v', vF), 1, vreg, srd, soff, imm, "sc1")
        for a in after: self.p.dep(a, g, 0)
        c = self.V(f"{cmp} vcc, {want}, v{vF}\n    s_cbranch_vccnz L_spin_{name}\nL_ret_{name}:", R('v', vF) + R('v', vreg), [], kind='C', cost=2, firm=True)
        self.p.LAT_G = lat
        self.tail += f"""L_spin_{name}:
    s_mov_b32 s{sCnt}, 0
L_spin2_{name}:
    {g.text}
    s_waitcnt vmcnt(0)
    {cmp} vcc, {want}, v{vF}
    s_cbranch_vccz L_ret_{name}
    s_add_u32 s{sCnt}, s{sCnt}, 1
    s_cmp_lt_u32 s{sCnt}, 0x40000
    s_cbranch_scc0 L_ret_{name}
    s_sleep 1
    s_branch L_spin2_{name}
"""
        return g, c
    def flag(self, word, stores, after=()):
        f = self.ST(ONEV, 1, vFW, SWS, sFl, 4 * word, 'sc1')
        for s in stores: f.needs.append(s); self.p.dep(s, f, 0)
        for a in after: self.p.dep(a, f, 0)
        return f
    def pack(self, src, dst, scale=None, swap=False, acc=None, **kw):
        if scale is not None:
            for i in range(8): self.asm(f"v_mul_f32 v{src+i}, {scale}, v{src+i}", **kw)
        for i in range(4): self.asm(f"v_cvt_pk_bf16_f32 v{dst+i}, v{src+2*i}, v{src+2*i+1}", **kw)
        if swap:
            for i in range(2):
                self.V(f"v_permlane16_swap_b32 v{dst+i}, v{dst+2+i}", [('v', dst + i), ('v', dst + 2 + i)], [('v', dst + i), ('v', dst + 2 + i)], kind='P', **kw)
        if acc is not None:
            for i in range(4): self.asm(f"v_accvgpr_write_b32 a{acc+i}, v{dst+i}", **kw)

    def witem(self, name, n, hs, b, cost, sl=None):
        part = 'KV'[hs]; ph = int(name[1]); wf = self.opt.get('wflags', '')
        if sl is None: sl = self.slot(part)
        c = (name, n, hs)
        if name[0] == 'Q': self.item(part, sl, c, b, lambda j: (SWQ, vW, sWQn + n, (hs * 64 + 4 * j) * 8192 + ph * 256, wf), cost)
        else: self.item(part, sl, c, b, lambda j: (SWO, vW, sWOn + n, (ph * 128 + 64 * hs + 16 * j) * 1024, wf), cost)
        return sl, c
    def pgroups(self, name, n, items, b, acc, zero, last, cell=None, xf=None, rotd=False):
        isq = name[0] == 'Q'
        ks = [2 * hs + u for hs in sorted(items) for u in range(2)]
        x8 = {}
        for k in ks:
            if len(ks) == 4: x8[k] = P8F + 4 * k
            else: x8[k] = X8B + 4 * (k & 1)
            if isq: self.D(('a', x8[k]), aX8 + k, n * 4096, [(('X8', n), 'X8')], bar=b)
            elif rotd: self.D(('a', x8[k]), aO8 + k, cell * 4096, [(('X8', cell), (name, n))], bar=b)
            else: self.D(('a', x8[k]), aL16, (cell * 4 + k) * 1024, [(('X8', cell), (name, n))], bar=b)
        if isq: xf = lambda q, k: ('a', XF + (q * 16 + n * 4 + k) * 4)
        for t in range(8):
            f = {}
            for k in ks:
                hs, u = k >> 1, k & 1; sl, c = items[hs]
                f[k] = self.nextfb()
                for a in range(2):
                    if rotd:
                        assert items[0][0] == items[1][0]
                        self.T(f[k] + 2 * a, aWO + 8 * k + t, sl * 16384 + a * 1024, [(('KV'[h2], sl, 2 * u2 + a), items[h2][1]) for h2 in range(2) for u2 in range(2)], b)
                    else:
                        self.T(f[k] + 2 * a, (aVk, aV)[hs] + t, sl * 16384 + (2 * u + a) * 1024, [(('KV'[hs], sl, 2 * u + a), c)], b)
            nq = 3 if t < 2 else 2
            for q in range(nq):
                d = acc + (q * 8 + t) * 4
                for i, k in enumerate(ks if q != 1 else ks[::-1]):
                    self.M(d, ('a', f[k]), xf(q, k) if q < 2 else ('a', x8[k]), None if (zero and i == 0) else d)
            if last and t & 1: self.proj_out(name, acc, t >> 1)
            yield nq * len(ks)
    def proj_out(self, name, acc, s):
        if name[0] == 'Q':
            h = int(name[1])
            if s == 0:
                self.pack(acc + 64, acc + 64, f"s{sC}", True)
                self.q8w = self.p.add(Op('DW', f"ds_write_b128 v{aQ8}, {rs('v', acc + 64, 4)} offset:{Q8R - X8R}", rd=R('v', acc + 64, 4) + R('v', aQ8), lds_wr=[(('Q8', 0), ('Q8', h))]))
            for q in range(2):
                r = acc + (q * 8 + 2 * s) * 4
                self.pack(r, r, f"s{sC}", True, acc=QFR[h](q, s))
        elif s < 3:
            if s == 0:
                self.pst = []
                self.pack(acc + 64, TMP)
                self.pst.append(self.ST(TMP, 4, vL16, SWS, sM8s, 0, 'sc1'))
            for q in range(2):
                r = acc + (q * 8 + 2 * s) * 4
                self.pack(r, r)
                self.pst.append(self.ST(r, 4, vL16, SWS, sMB + s, q * 1024, 'sc1'))
    def q0(self):
        p = self.p; opt = self.opt; xf = opt.get('xflags', '')
        self.marks.append(('Q0', p.nm()))
        xslots = [0, 2, 0, 1]; wslots = [1, 3, 2, 0]; c0 = (0, opt.get('pc0', 50))
        for n in range(4):
            b = self.bar()
            est = -1 if n == 0 else (n - 1) * 72 + opt.get('xest', 12)
            for a, part in enumerate('KV'):
                c = ('X', n, a)
                self.item(part, xslots[n], c, None, lambda j: (SX, vX + j, sXn + n, a * 16384 + j * 1024, xf), c0, key=est)
                for k in range(4):
                    self.D(('a', XF + (a * 16 + n * 4 + k) * 4), aXo + a * 4 + k, xslots[n] * 16384,
                           [((part, xslots[n], j), c) for j in range(4)], private=True, est=est, soft=est + 8)
            self.piece([('X8', n)], 'X8', sW10, X8R + n * 4096, (SX, vX8, sXn + n, 131072, xf), b, c0)
            items = {hs: self.witem('Q0', n, hs, b, c0, wslots[n]) for hs in range(2)}
            if n == 1:
                e = opt.get('atat', 72)
                o = p.add(Op('ST', f"buffer_atomic_add v{ONEV}, v{vZ}, {rs('s', SDBG, 4)}, s{sIni} offen sc1", rd=R('v', ONEV) + R('v', vZ), est=e, soft=e))
                p.dep(b, o, 0)
            run(self.pgroups('Q0', n, items, b, R1, n == 0, n == 3))
    def wphase(self):
        p = self.p; opt = self.opt
        self.marks.append(('W', p.nm()))
        order = [(0, 0), (1, 0), (0, 1), (0, 2), (0, 3), (1, 1), (1, 2), (1, 3)]
        for m, (ph, n) in enumerate(order):
            name = 'W%d' % ph; cell = m & 3
            b = self.bar([self.o8w[ph]] if n == 0 else [])
            if n == 1:
                g, c = self.poll('o%d' % ph, vFO, SWS, None, 4 * ph, 1, after=[self.fl[ph]['op']] + ([self.c0] if ph == 0 else []))
                eg = self.plan(g, 0, b.pin - 90, (0, 20), [(self.fl[ph], opt.get('dfl%d' % ph, (1500, 700)[ph]))], lead=0)
                self.gate[ph] = self.plan(c, 0, b.pin - 60, (0, 0), [(eg, opt.get('dpl%d' % ph, (900, 500)[ph]))], lead=0)
            if n == 0:
                xf = (lambda q, k: ('a', WXB[0][q] + 4 * k)) if ph == 0 else (lambda q, k: ('v', R1 + (q * 8 + 2 * k) * 4))
            else:
                blk = WXB[(m - 1) & 3]; gt = self.gate[ph]
                xf = lambda q, k, blk=blk: ('a', blk[q] + 4 * k)
                if opt.get('orot', 1): oc = (self.F, self.HIT) if n == 1 else (0, self.HIT)
                else: oc = (self.F * (0.5 if n == 1 else 0.25), self.SHM)
                self.piece([('X8', cell)], (name, n), sXw + 3, X8R + cell * 4096, (SWS, vL8, sOn + n, ph * 36864, 'sc1'), b, oc, gate=gt)
                for q in range(2):
                    sa = self.S(f"s_add_u32 s{sT2}, s{sOn+n}, {ph * 36864 + q * 4096}", R('s', sOn + n), R('s', sT2))
                    for s in range(4):
                        g = self.G(xf(q, s), 4, vL16, SWS, sT2, s * 1024, 'sc1')
                        p.dep(gt['op'], g, 0)
                        self.plan(g, p.nm() - (opt.get('gest0', 300) if m < 4 else opt.get('gest', 210)), p.nm(), oc, [(gt, 0)], chain='g', pre=(sa if s == 0 else None))
            wc = (0, self.HIT) if (opt.get('pf', 1) and (n > 0 or opt.get('pfat', 400) < 1149)) else (self.F / 8, self.SHM)
            items = {hs: self.witem(name, n, hs, b, wc) for hs in range(2)}
            if opt.get('pf', 1) and n > 0:
                for x in self.pieces[-8:]: x['after'].append((self.pfe[-1], 500))
            if m == 5: self.asm(setup_final(), est=p.nm())
            run(self.pgroups(name, n, items, b, R2, m == 0, m == 7, cell=cell, xf=xf, rotd=(n == 0)))
    def attention(self):
        p = self.p; opt = self.opt
        Sr = lambda j, q: SP + (j * 2 + q) * 4
        S8 = SP + 32; P8o = SP + 52
        Pr = lambda u, q: SP + 36 + ((u & 1) * 2 + q) * 4
        OA = [R2, R1]
        kv = opt.get('kvflags', 'nt')
        st = {}
        kc = (self.F, self.HIT)
        def kitem(h, i, b):
            sl = self.slot('K'); c = ('K', h, i)
            self.item('K', sl, c, b, lambda j: (SK, vK, sKV, h * 131072 + i * 16384 + j * 1024, kv), kc)
            st['k'] = (sl, c, b)
        def vitem(h, i, b):
            sl = self.slot('V'); c = ('V', h, i)
            self.item('V', sl, c, b, lambda j: (SV, vV, sKV, h * 131072 + i * 16384 + j * 1024, kv), kc)
            st['v'] = (sl, c, b)
        def softmax(src, dst):
            for i in range(4):
                self.V(f"v_exp_f32 v{src+i}, v{src+i}", R('v', src + i), R('v', src + i), kind='E')
            for i in range(2): self.asm(f"v_cvt_pk_bf16_f32 v{dst+i}, v{src+2*i}, v{src+2*i+1}")
        def head_start(h, b):
            for s in range(4):
                self.D(('a', QF8[h] + 4 * s), aQ8 + s, Q8R - X8R, [(('Q8', 0), ('Q8', h))], bar=b)
        def safe_call(h):
            qf = sum((R('a', QFR[h](q, s), 4) for q in range(2) for s in range(4)), [])
            self.V(f"s_cmp_eq_u32 s{sThr+h}, -1\n    s_cbranch_scc1 L_max{h}\nL_maxret{h}:", qf + R('a', QF8[h], 16), R('v', OA[h], 28) + R('v', NEGM, 12), kind='C', cost=2)
            self.tail += maxpass(h, OA[h])
        def A8(h, i):
            sl, c, b = st['k']
            if i == 0: safe_call(h)
            for s in range(4):
                f = self.nextfb()
                self.D(('a', f), aK8 + s, sl * 16384, [(('K', sl, j), c) for j in range(4)], bar=b)
                self.M(S8, ('a', f), ('a', QF8[h] + 4 * s), NEGM + 8 if s == 0 else S8)
            softmax(S8, P8o)
            st['dw'] = p.add(Op('DW', f"ds_write_b64 v{aP8w}, {rs('v', P8o, 2)} offset:{(i & 1) * 2048}", rd=R('v', P8o, 2) + R('v', aP8w),
                                lds_wr=[(('P8', i & 1), ('P8', h, i))]))
            p.dep(b, st['dw'], 0)
            yield 4
        def A(h, u):
            sl, c, b = st['k']
            for jj in range(2):
                j = (u & 1) * 2 + jj
                f = []
                for s in range(4):
                    f.append(self.nextfb())
                    self.D(('a', f[s]), aK + s, sl * 16384 + j * 1024, [(('K', sl, j), c)], bar=b)
                for q in range(2):
                    for i, s in enumerate(range(4) if q == 0 else range(3, -1, -1)):
                        self.M(Sr(j, q), ('a', f[s]), ('a', QFR[h](q, s)), NEGM + 4 * q if i == 0 else Sr(j, q))
                    softmax(Sr(j, q), Pr(u, q) + 2 * jj)
                yield 8
        def vfrag(t, uu):
            sl, c, b = st['v']
            f = self.nextfb()
            for a in range(2):
                self.T(f + 2 * a, aV + t, sl * 16384 + (2 * uu + a) * 1024, [(('V', sl, 2 * uu + a), c)], b)
            return f
        def p8frag(h, u):
            i = u >> 1; uu = u & 1
            self.D(('a', P8F + 4 * uu), aL16, P8R - X8R + (i & 1) * 2048 + uu * 1024, [(('P8', i & 1), ('P8', h, i))], bar=st['v'][2])
        bop = lambda u, q: ('v', Pr(u, q)) if q < 2 else ('a', P8F + 4 * (u & 1))
        acc = lambda h, t, q: OA[h] + (q * 8 + t) * 4 if q < 2 else OA[h] + 64 + (t - 6) * 4
        def rowsum(u, q): self.M(LACC + 4 * q, ('a', ONES), bop(u, q), None if u == 0 else LACC + 4 * q, 'a')
        def B(h, u):
            p8frag(h, u)
            for t in range(8):
                f = vfrag(t, u & 1); n = 0
                for q in range(3 if t >= 6 else 2):
                    self.M(acc(h, t, q), ('a', f), bop(u, q), None if u == 0 else acc(h, t, q)); n += 1
                if t in (1, 3, 5): rowsum(u, t >> 1); n += 1
                yield n
        def Blast(h):
            p8frag(h, 14); p8frag(h, 15)
            nh = opt.get('nh', 5)
            for t in range(nh):
                f = vfrag(t, 0)
                for q in range(2): self.M(acc(h, t, q), ('a', f), bop(14, q), acc(h, t, q))
                if t < 3: rowsum(14, t)
            for q in (2, 0, 1): rowsum(15, q)
            for t in range(8):
                us = [1] if t < nh else [0, 1]
                f = {uu: vfrag(t, uu) for uu in us}
                for q in range(3 if t >= 6 else 2):
                    for uu in (us if q != 1 else us[::-1]): self.M(acc(h, t, q), ('a', f[uu]), bop(14 + uu, q), acc(h, t, q))
        def chain(*gs):
            for g in gs: yield from g
        def q1(m, b):
            it = {m & 1: self.witem('Q1', m >> 1, m & 1, b, (self.F / 8, self.HIT))}
            return self.pgroups('Q1', m >> 1, it, b, R1, m == 0, m == 7)
        def finish_head(h):
            e = p.nm() - (24 if h else 0)
            if h == 0: self.asm(setup_mid(), soft=e)
            for q in range(3):
                self.asm(f"v_accvgpr_read_b32 v{RCP+q}, a{LACC+4*q}\nv_subrev_u32 v{TMP+q}, s{sLo}, v{RCP+q}", soft=e)
            self.asm(f"v_max3_u32 v{TMP}, v{TMP}, v{TMP+1}, v{TMP+2}", soft=e)
            cw = p.add(Op('DW', f"ds_write_b32 v{aCK}, v{TMP}", rd=R('v', TMP) + R('v', aCK), lds_wr=[(('CK', 0), ('CK', h))], soft=e))
            sts = []
            if h == 0: t0 = opt.get('st0', 1340); v0 = p.nm() + 10; vsp = opt.get('vsp0', 14)
            else: t0 = opt.get('st1', 1860); v0 = p.nm() - opt.get('v01', 10); vsp = opt.get('vsp1', 7)
            for q in range(3):
                self.V(f"v_rcp_f32 v{RCP+q}, v{RCP+q}", R('v', RCP + q), R('v', RCP + q), kind='E')
            for m, (s, q) in enumerate([(s, q) for s in range(3) for q in range(2)] + [(3, 2), (3, 0), (3, 1)]):
                r = OA[h] + (q * 8 + 2 * s) * 4 if q < 2 else OA[h] + 64
                self.pack(r, r, f"v{RCP+q}", acc=(WXB[0][q] + 4 * s if h == 0 and q < 2 else None), soft=v0 + vsp * (m + 1), firm=(2 if vsp < 6 else True))
                if q == 2:
                    self.asm(f"v_add_u32 v{r+4}, s{sXw+3}, v{aL16}", soft=v0 + vsp * (m + 1))
                    self.o8w[h] = p.add(Op('DW', f"ds_write_b128 v{r+4}, {rs('v', r, 4)} offset:{h * 4096}", rd=R('v', r, 5), lds_wr=[(('X8', h), ('W%d' % h, 0))], soft=v0 + vsp * (m + 1)))
                    p.dep(self.bars[-1], self.o8w[h], 0)
                sa = self.S(f"s_add_u32 s{sT}, s{sOs+s if q < 2 else sOn}, {h * 36864 + (q & 1) * 4096}", R('s', sOs + s if q < 2 else sOn), R('s', sT))
                o = self.ST(r, 4, vL16 if q < 2 else vL8, SWS, sT, 0, 'sc1')
                sts.append(self.plan(o, max(t0, v0 + vsp * (m + 1) + 4), t0, (self.FS, self.FS), chain='st', lead=-120, pre=sa))
            self.ost = sts
            def check(b):
                b.needs.append(cw); p.dep(cw, b, 4)
                self.D(('v', TMP), aL16, CKR - X8R, [(('CK', 0), ('CK', h))], bar=b, soft=b.pin + 2, firm=True)
                self.asm(f"v_max3_u32 v{TMP}, v{TMP}, v{TMP+1}, v{TMP+2}\nv_max_u32 v{TMP}, v{TMP}, v{TMP+3}", soft=b.pin + 10, firm=True)
                c = self.V(f"v_cmp_lt_u32 vcc, s{sThr+h}, v{TMP}\n    s_cbranch_vccnz L_fail{h}", R('v', TMP) + R('s', sThr + h), [], kind='C', cost=2, soft=b.pin + 12, firm=True)
                self.fl[h] = self.plan(self.flag(h, [x['op'] for x in sts], after=[c]), b.pin + 14, (1959, 2175)[h] - 110, (0, 20), [(sts[-1], opt.get('dst', 350))], lead=0)
            self.pend.append((p.nm() + 8, check))
            self.tail += f"L_fail{h}:\n" + "".join(f"    s_mov_b32 s{sThr+k}, -1\n" for k in range(h, 2)) + f"""    s_mov_b32 s{sIni}, {OOB}
    s_waitcnt vmcnt(0) lgkmcnt(0)
    s_nop 15
    s_barrier
    s_branch L_restart
"""
        def prefetch(r):
            self.asm(f"v_bfe_u32 v{r}, v{vL16}, 5, 2\nv_lshlrev_b32 v{r}, 10, v{r}\nv_and_b32 v{r+1}, 16, v{vL16}\nv_lshl_add_u32 v{r}, v{r+1}, 3, v{r}", soft=p.nm(), firm=True)
            self.pfe = []
            for k in range(8):
                g = self.G(('v', r + 1), 1, r, SWO, sPFo, 0, '')
                self.S(f"s_add_u32 s{sPFo}, s{sPFo}, 4096", R('s', sPFo), R('s', sPFo))
                e = opt.get('pfat', 400) + k * opt.get('pfsp', 95)
                self.pfe.append(self.plan(g, max(e, p.nm()), e + opt.get('pfneed', 100), (self.F, self.HIT), chain='pf', lead=0))
        self.marks.append(('P1', p.nm()))
        b = self.bar([self.q8w]); head_start(0, b); kitem(0, 0, b)
        merge(chain(A8(0, 0), A(0, 0), A(0, 1)), delayed(q1(0, b), 0), 36, 36)
        for i in range(7):
            b = self.bar([st['dw']]); vitem(0, i, b); kitem(0, i + 1, b)
            if i == 0 and opt.get('pf', 1) and opt.get('pfat', 400) < 1149: prefetch(TMP)
            merge(chain(B(0, 2 * i), A8(0, i + 1), A(0, 2 * i + 2), B(0, 2 * i + 1), A(0, 2 * i + 3)), q1(i + 1, b), 78, 36,
                  front=(opt.get('front', 50) / 100 if i == 6 else 1.0))
        self.marks.append(('P2', p.nm()))
        b = self.bar([st['dw'], self.q8w]); vitem(0, 7, b); kitem(1, 0, b); head_start(1, b)
        run(chain(B(0, 14), A8(1, 0), A(1, 0), B(0, 15)))
        finish_head(0)
        run(A(1, 1))
        for i in range(8):
            b = self.bar([st['dw']]); vitem(1, i, b)
            if i == 0:
                g, self.c0 = self.poll('ini', vIR, SDBG, None, 0, 16)
                g.est = g.soft = p.nm(); self.c0.est = self.c0.soft = p.nm() + 160
            if i == 3 and opt.get('pf', 1) and opt.get('pfat', 400) >= 1149: prefetch(NEGM - NEGM + TMP)
            if i == 7: Blast(1); break
            kitem(1, i + 1, b)
            run(chain(B(1, 2 * i), A8(1, i + 1), A(1, 2 * i + 2), B(1, 2 * i + 1), A(1, 2 * i + 3)))
        t = f"s_and_b32 s3, s{sXw}, 1024\ns_lshl_b32 s3, s3, 1\ns_and_b32 s4, s{sXw}, 2048\ns_lshl_b32 s4, s4, 5\ns_or_b32 s3, s3, s4\n"
        t += "s_xor_b32 s4, s3, 2048\ns_xor_b32 s5, s3, 65536\ns_xor_b32 s6, s3, 67584\n"
        for k in range(4): t += f"v_add_u32 v{aO8+k}, s{sXw+k}, v{aL16}\n"
        for tt in range(8):
            for k in range(4): t += f"v_xor_b32 v{aWO+8*k+tt}, s{3+k}, v{aVk+tt}\n"
        self.asm(t)
        finish_head(1)
    def final(self):
        p = self.p
        self.marks.append(("F", p.nm()))
        fl = self.flag(2, self.pst); fl.est = p.nm() - 1
        p.LAT_G = 0
        g, c = self.poll('pp', vFP, SWS, None, 8, 1, after=[fl])
        ld = []
        for e in range(3):
            for q in range(2):
                if e == 2 and q == 0: self.S(f"s_add_u32 s{sMR}, s{sMR}, 4096", R('s', sMR), R('s', sMR))
                ld.append(self.G(('a', FB + (e * 2 + q) * 4), 4, vL16, SWS, sMR, ((e * 2 + q) & 3) * 1024, 'sc1'))
        for e in range(3):
            ld.append(self.G(('a', FB + (6 + e) * 4), 4, vL16, SWS, sM8r, (e + 1) * 1024, 'sc1'))
        for g in ld: p.dep(c, g, 0); g.soft = -1000
        p.fence("; partial sums requested")
        rq = lambda q: R2 + (q * 8 + 6) * 4 if q < 2 else R2 + 64
        for q, e in [(0, 0), (1, 0), (0, 1), (1, 1), (0, 2), (1, 2), (2, 0), (2, 1), (2, 2)]:
            bop = ('a', FB + ((e * 2 + q) if q < 2 else 6 + e) * 4)
            self.M(rq(q), ('a', SELX), bop, rq(q)); self.M(rq(q) + 4, ('a', SELY), bop, rq(q) + 4)
        for q in range(3):
            self.pack(rq(q), rq(q), None, True)
            if q == 1: self.S(f"s_add_u32 s{sOut}, s{sOut}, 16384", R('s', sOut), R('s', sOut))
            self.ST(rq(q), 4, vOUT, SOUT, sOut if q < 2 else sO8ut, 0, self.opt.get('outflags', ''))
    def make_dma(self):
        p = self.p
        readers = {}; writers = {}
        for o in p.ops:
            for pc, c in o.lds_rd: readers.setdefault((pc, c), []).append(o)
            for r in o.wr: writers.setdefault(r, []).append(o)
        def firstm(o):
            return min(s.idx for s, _ in o.succs if s.kind == 'M' and o in s.needs)
        prev = {}; opt = self.opt
        for n, x in enumerate(self.vm): x['n'] = n
        for x in self.pieces:
            x['rd'] = list(dict.fromkeys(o for c in x['cells'] for o in readers[(c, x['content'])]))
            x['need'] = x['bar'].pin if x['key'] is None else x['key']
            x['lead'] = None
        for x in sorted(self.pieces, key=lambda x: (x['need'], x['n'])):
            if x['content'] in (('W0', 3), ('W1', 1)): prev[x['cells'][0]] = ('W%d' % x['cells'][0][1], 0)
            old = list(dict.fromkeys(o for c in x['cells'] if c in prev for o in readers[(c, prev[c])]))
            x['old'] = old; x['fb'] = None; av = -1
            if old:
                if old[0].private: av = max(o.est for o in old) + 8 + p.LAT_DS
                else:
                    x['fb'] = max((b for b in self.bars if b.drain & set(old)), key=lambda b: b.seq); av = x['fb'].pin + 1
            if x['need'] >= 279: av = max(av, opt.get('kv0', 0))
            x['av'] = av
            for c in x['cells']: prev[c] = x['content']
        T = self.tmap or [11.0 * g for g in range(p.nm() + 1)]
        tof = lambda g: T[min(max(int(g), 0), len(T) - 1)]
        gof = lambda t: min(bisect.bisect_left(T, t), len(T) - 2)
        rem = sorted(self.vm, key=lambda x: (x['need'], x['n'])); order = []; tp = tf = 0.0; nb = 0; fifo = []
        Q = opt.get('Q', 4); LATM = opt.get('latm', 600); LATH = opt.get('lath', 300)
        while rem:
            if nb < opt.get('burst', 30) and rem[0]['av'] < 0:
                x = rem.pop(0); x['gap'] = -1; x['t'] = x['s'] = x['e'] = 0.0; order.append(x); fifo.append(x); nb += 1; continue
            nb = 999; cand = []; seen = set()
            for x in rem[:60]:
                if x['chain']:
                    if x['chain'] in seen: continue
                    seen.add(x['chain'])
                    x = min((y for y in rem if y['chain'] == x['chain']), key=lambda y: y['n'])
                if any('t' not in y for y, _ in x['after']): continue
                fc, pc = x['cost']
                q = 8 if x['chain'] == 'st' and fifo[-1].get('chain') == 'st' else (opt.get('Q1', 2) if 400 < x['need'] <= 1149 else Q)
                lo = max(tof(x['av']), order[-1]['t'] + (opt.get('isp', 36) if pc else 0))
                iss = max([lo] + [y['e'] + d for y, d in x['after']] + ([fifo[-q]['s']] if pc else []))
                lim = tof(x['need']) - opt.get('minlead', 650) if x['lead'] is None else tof(x['need'] - x['lead'])
                lim = max(lim, tof(x['av']), order[-1]['t'] + (12 if pc else 0))
                cand.append((min(iss, lim), x, iss, lim))
            t0 = min(c[0] for c in cand)
            near = [c for c in cand if c[0] <= t0 + 15]
            cont = [c for c in near if c[1]['chain'] == 'st' and fifo[-1].get('chain') == 'st']
            fill = [c for c in near if c[1]['cost'][0] <= 30 and max(tp, c[0]) + c[1]['cost'][1] <= tf + 10]
            _, x, iss, lim = min(cont or fill or near, key=lambda c: (c[1]['need'], c[1]['n']))
            if iss > lim:
                d = iss - lim; iss = lim; tf -= d; tp -= d
                for y in order: y['s'] -= d; y['e'] -= d
                self.late.append((gof(iss), int(d)))
            fc, pc = x['cost']
            x['t'] = iss; x['gap'] = gof(iss)
            if pc:
                x['s'] = max(iss, tp, tf if fc > 30 else 0)
                tp = x['s'] + pc; tf = max(tf, x['s']) + fc
                x['e'] = x['s'] + max(fc, pc); fifo.append(x)
                if x['lead'] is None:
                    d = x['e'] + (LATM if fc else LATH) - tof(x['need'])
                    if d > 0: self.miss.append((x['need'], int(d)))
            else: x['s'] = x['e'] = iss
            order.append(x); rem.remove(x)
            if x['op'] is not None:
                x['op'].est = x['op'].soft = x['gap']
                if x['pre'] is not None: x['pre'].est = x['gap'] - 6
        order = [x for x in order if x['op'] is None]
        prevL = None; cur = None
        p.fence_op = None
        for x in order:
            srd, vr, sb, lit, fl = x['src']
            imm = x['ldsoff'] - cur[1] if cur and cur[0] == x['ldsreg'] else -1
            new = []
            if not (0 <= imm < 4096) or lit - imm < 0:
                new.append(self.S(f"s_add_u32 m0, s{x['ldsreg']}, {x['ldsoff']}", [], [('m0', 0)], nofence=True))
                cur = (x['ldsreg'], x['ldsoff'], cur[2] if cur else None); imm = 0
            if cur[2] != (sb, lit - imm):
                new.append(self.S(f"s_add_u32 s{sD}, s{sb}, {lit - imm}", [], R('s', sD), nofence=True))
                cur = (cur[0], cur[1], (sb, lit - imm))
            L = Op('L', f"buffer_load_dwordx4 v{vr}, {rs('s', srd, 4)}, s{sD} offen offset:{imm} {fl} lds", rd=[('m0', 0)] + R('s', sD),
                   lds_wr=[(c, x['content']) for c in x['cells']], nofence=True)
            L.est = x['gap']
            p.add(L); L.rd += R('v', vr)
            for w in x['prod']:
                for o in new + [L]: p.dep(w, o, 1)
            pv = [w for w in x['prod'] if ('v', vr) in w.wr]
            later = [w for w in writers.get(('v', vr), []) if not pv or w.seq > pv[0].seq]
            if later: p.dep(L, later[0], 1)
            if prevL is not None: p.dep(prevL, L, 1)
            prevL = L
            if x['fb'] is not None: p.dep(x['fb'], L, 0)
            elif x['old']:
                for o in x['old']: L.needs.append(o); p.dep(o, L, p.LAT_DS)
            if x['gate']: p.dep(x['gate']['op'], L, 0)
            L.soft = x['gap']
            if x['bar'] is not None:
                x['bar'].needs.append(L); p.dep(L, x['bar'], 0)
            else:
                for o in x['rd']: o.needs.append(L); p.dep(L, o, 0)
    def finish(self):
        assert not self.pend
        self.make_dma()
        lin = self.p.schedule()
        lin = insert_waits(lin)
        lin, nops = fix_hazards(lin)
        verify_lds(lin)
        t, res = stats(lin)
        mk = self.marks + [("end", len(res))]
        rep = [f"{n0}:{sum(res[i0:i1])}/{16*(i1-i0)}" for (n0, i0), (n1, i1) in zip(mk, mk[1:])]
        self.res = res
        lt = {}
        for g, d in self.late: lt[g // 50 * 50] = lt.get(g // 50 * 50, 0) + d
        ms = {}
        for g, d in self.miss: ms[g] = max(ms.get(g, 0), d)
        if self.tmap: print("; planned stalls (gap: ns)", lt, "late data", ms, file=sys.stderr)
        if self.tmap: print(f"; instrs {len(lin)} mfma {len(self.p.mf)} nops {nops} est cycles {t}  " + " ".join(rep), file=sys.stderr)
        return lin

def delayed(g, n):
    yield 1000 * n + 1 if n else 4
    yield from g

def maxpass(h, scr):
    F, A0, MX, AD = scr, scr + 4, scr + 16, scr + 20
    s = f"""L_max{h}:
    s_nop 15
    v_lshrrev_b32 v{AD+4}, 4, v{vL16}
    v_and_b32 v{AD+5}, 15, v{AD+4}
    v_lshlrev_b32 v{AD+5}, 8, v{AD+5}
    v_and_b32 v{AD+6}, 16, v{AD+4}
    v_lshl_add_u32 v{AD+5}, v{AD+6}, 1, v{AD+5}
    v_lshrrev_b32 v{AD+6}, 5, v{AD+4}
    v_lshl_add_u32 v{AD+5}, v{AD+6}, 4, v{AD+5}
"""
    for k in range(4):
        s += f"    s_lshr_b32 s{sCnt}, s{sXw+k}, 4\n    v_add_u32 v{AD+k}, s{sCnt}, v{AD+5}\n"
    for q in range(3): s += f"    v_mov_b32 v{MX+q}, 0xff800000\n"
    s += f"    s_add_u32 s{sU}, s{sKV}, {h * 131072}\n    s_mov_b32 s{sCnt}, 0\nL_maxl{h}:\n"
    for k in range(4):
        s += f"    buffer_load_dwordx4 {rs('v', F, 4)}, v{AD+k}, {rs('s', SK, 4)}, s{sU} offen\n    s_waitcnt vmcnt(0)\n"
        for q in range(3):
            bop = rs('a', QFR[h](q, k) if q < 2 else QF8[h] + 4 * k, 4)
            d = rs('v', A0 + 4 * q, 4)
            s += f"    v_mfma_f32_16x16x32_bf16 {d}, {rs('v', F, 4)}, {bop}, {'0' if k == 0 else d}\n"
        s += "    s_nop 15\n"
    for q in range(3):
        a = A0 + 4 * q
        s += f"    v_max3_f32 v{MX+q}, v{MX+q}, v{a}, v{a+1}\n    v_max3_f32 v{MX+q}, v{MX+q}, v{a+2}, v{a+3}\n"
    s += f"""    s_add_u32 s{sU}, s{sU}, 4096
    s_add_u32 s{sCnt}, s{sCnt}, 1
    s_cmp_lt_u32 s{sCnt}, 32
    s_cbranch_scc1 L_maxl{h}
"""
    for q in range(3):
        for op in ("v_permlane16_swap_b32", "v_permlane32_swap_b32"):
            s += f"    v_mov_b32 v{F}, v{MX+q}\n    s_nop 1\n    {op} v{F}, v{MX+q}\n    s_nop 1\n    v_max_f32 v{MX+q}, v{F}, v{MX+q}\n"
        for i in range(4): s += f"    v_xor_b32 v{NEGM+4*q+i}, 0x80000000, v{MX+q}\n"
    s += f"    s_nop 7\n    s_branch L_maxret{h}\n"
    return s

def srd(reg, ptr, size):
    return f"    s_mov_b32 s{reg}, s{ptr}\n    s_mov_b32 s{reg+1}, s{ptr+1}\n    s_mov_b32 s{reg+2}, {size}\n    s_mov_b32 s{reg+3}, 0x20000\n"

def lane_setup():
    s = f"""    v_mbcnt_lo_u32_b32 v{vLN}, -1, 0
    v_mbcnt_hi_u32_b32 v{vLN}, -1, v{vLN}
    s_lshl_b32 s3, s{sW}, 15
    v_and_b32 v{vR}, 15, v{vLN}
    v_lshrrev_b32 v{vG}, 4, v{vLN}
    v_lshlrev_b32 v{vL16}, 4, v{vLN}
    v_xor_b32 v{TMP}, v{vR}, v{vG}
    v_lshlrev_b32 v{TMP}, 4, v{TMP}
    v_lshl_add_u32 v{TMP}, v{vG}, 10, v{TMP}        ; i*1024 + (r^i)*16
    v_add_u32 v{vX}, s3, v{TMP}
"""
    for j in range(1, 4):
        s += f"    v_xor_b32 v{vX+j}, {64*j}, v{vX}\n    v_add_u32 v{vX+j}, {3072*j}, v{vX+j}\n"
    s += f"""    s_mul_i32 s3, s{sW}, 4160
    v_xor_b32 v{vX8}, s3, v{TMP}                  ; (4w+i)*1024 + (r^(4w+i))*16
    s_lshl_b32 s3, s{sW}, 2
    v_add_u32 v{TMP+2}, s3, v{vG}                 ; 4w+i
    v_and_b32 v{TMP}, 7, v{TMP+2}
    v_lshlrev_b32 v{TMP}, 1, v{TMP}
    v_xor_b32 v{TMP}, v{vR}, v{TMP}
    v_lshlrev_b32 v{TMP}, 4, v{TMP}
    s_lshl_b32 s3, s{sW}, 4
    v_add_u32 v{TMP+3}, s3, v{vG}
    v_lshl_add_u32 v{vW}, v{TMP+3}, 13, v{TMP}
    v_lshl_add_u32 v{TMP+1}, v{vG}, 8, s{sLw}       ; w*4096 + i*256
    v_add_u32 v{vV}, v{TMP}, v{TMP+1}
    v_and_b32 v{TMP}, 0xf0, v{vX8}
    v_add_u32 v{vK}, v{TMP}, v{TMP+1}
"""
    return s

def prologue(opt):
    s = f""".globl {KNAME}
.p2align 8
.type {KNAME},@function
{KNAME}:
    s_cmp_ge_u32 s2, 256
    s_cbranch_scc1 L_exit
;STAMP
    s_load_dwordx8 s[{SX}:{SX+7}], s[0:1], 0
    s_load_dwordx8 s[{SWO}:{SWO+7}], s[0:1], 32
    v_lshrrev_b32 v1, 6, v0
    s_and_b32 s3, s2, 7
    v_readfirstlane_b32 s{sW}, v1
    s_lshr_b32 s4, s2, 3
    s_and_b32 s5, s3, 1
    s_lshl_b32 s5, s5, 3
    s_and_b32 s6, s4, 7
    s_add_u32 s{sB}, s5, s6
    s_lshr_b32 s{sHG}, s3, 1
    s_lshr_b32 s{sJ}, s4, 3
    s_lshl_b32 s5, s{sHG}, 3
    s_lshl_b32 s6, s{sJ}, 1
    s_add_u32 s{sH0}, s5, s6
    s_lshl_b32 s{sLw}, s{sW}, 12
    s_lshl_b32 s{sW10}, s{sW}, 10
    s_xor_b32 s5, s{sW}, s{sHG}
    s_lshl_b32 s{sXw}, s5, 10
    s_xor_b32 s7, s{sB}, s{sJ}
    s_and_b32 s7, s7, {opt.get('rot', 1)}
    s_mul_i32 s5, s{sB}, 147456
    s_lshl_b32 s6, s{sH0}, 8
"""
    for n in range(4):
        s += f"""    s_xor_b32 s3, s7, {n}
    s_lshl_b32 s4, s3, 8
    s_add_u32 s{sXn+n}, s5, s4
    s_lshl_b32 s4, s3, 20
    s_add_u32 s{sWQn+n}, s6, s4
"""
    s += f"""    s_lshl_b32 s5, s{sB}, 5
    s_add_u32 s5, s5, s{sH0}
    s_lshl_b32 s{sKV}, s5, 17
    s_mov_b32 s{sIni}, 0
    s_mov_b32 s{sThr}, {L_HI - L_LO:#x}
    s_mov_b32 s{sThr+1}, {L_HI - L_LO:#x}
""" + lane_setup() + f"""    s_waitcnt lgkmcnt(0)
""" + srd(SDBG, SWO + 4, 256) + srd(SOUT, SWO + 2, 2359296) + srd(SWS, SWO + 6, WS_SIZE) + f"""    s_mov_b32 s{SWO+2}, 4194304
    s_mov_b32 s{SWO+3}, 0x20000
""" + srd(SWQ, SX + 6, 4194304) + srd(SV, SX + 4, 67108864) + srd(SK, SX + 2, 67108864) + f"""    s_mov_b32 s{SX+2}, 2359296
    s_mov_b32 s{SX+3}, 0x20000
;TLB
L_go:
"""
    return s

def prologue2(opt):
    s = f"""    ; x fragment read addresses
    v_lshlrev_b32 v{TMP}, 1, v{vG}
    v_xor_b32 v{TMP}, v{TMP}, v{vR}
    v_lshlrev_b32 v{TMP}, 4, v{TMP}
    v_lshl_add_u32 v{TMP}, v{vR}, 8, v{TMP}
    v_add_u32 v{aX8}, {X8R}, v{TMP}
    v_add_u32 v{aXo}, s{sLw}, v{TMP}
    v_add_u32 v{aXo+4}, {VR}, v{aXo}
"""
    for k in range(1, 4):
        m = (8 * (k >> 1) + (k & 1)) * 16
        s += f"    v_xor_b32 v{aX8+k}, {m}, v{aX8}\n    v_xor_b32 v{aXo+k}, {m}, v{aXo}\n    v_xor_b32 v{aXo+4+k}, {m}, v{aXo+4}\n"
    s += f"""    ; V / W read addresses: r' = r>>2, c = r&3
    v_lshrrev_b32 v{TMP+1}, 2, v{vR}
    v_and_b32 v{TMP}, 1, v{vG}
    v_lshl_add_u32 v{TMP}, v{TMP}, 2, v{TMP+1}
    v_lshlrev_b32 v{TMP}, 5, v{TMP}               ; f*16
    v_lshlrev_b32 v{TMP+3}, 12, v{vG}
    v_lshl_add_u32 v{TMP+3}, v{TMP+1}, 8, v{TMP+3}
    v_and_b32 v{TMP+2}, 3, v{vR}
    v_lshl_add_u32 v{TMP+3}, v{TMP+2}, 3, v{TMP+3}
    v_add_u32 v{TMP}, v{TMP}, v{TMP+3}
    s_lshr_b32 s4, s{sXw}, 4
    v_xor_b32 v{aVk}, s4, v{TMP}
    v_add_u32 v{aV}, {VR}, v{aVk}
"""
    for t in range(1, 8):
        s += f"    v_xor_b32 v{aVk+t}, {32*t}, v{aVk}\n    v_xor_b32 v{aV+t}, {32*t}, v{aV}\n"
    s += f"""    ; clear this wave's flag line (first pass only)
    s_lshl_b32 s3, s{sB}, 2
    s_add_u32 s3, s3, s{sJ}
    s_lshl_b32 s3, s3, 2
    s_add_u32 s3, s3, s{sHG}
    s_lshl_b32 s3, s3, 2
    s_add_u32 s3, s3, s{sW}
    s_lshl_b32 s3, s3, 7
    s_add_u32 s{sFl}, s3, {WS_FL}
    s_add_u32 s3, s{sFl}, s{sIni}
    v_mov_b32 v{vZ+1}, 0
    v_and_b32 v{TMP}, 3, v{vLN}
    v_lshlrev_b32 v{TMP+1}, 2, v{TMP}
    buffer_store_dword v{vZ+1}, v{TMP+1}, {rs('s', SWS, 4)}, s3 offen sc1
"""
    if opt.get('cpf', 1):
        s += f"""    ; pull this kernel's code into L2: 4 lines per wave
    s_getpc_b64 s[4:5]
L_pc:
    s_lshr_b32 s3, s2, 3
    s_lshl_b32 s3, s3, 2
    s_add_u32 s3, s3, s{sW}
    s_lshl_b32 s3, s3, 9
    v_lshl_add_u32 v{TMP}, v{TMP}, 7, s3
    v_min_u32 v{TMP}, L_exit-L_pc, v{TMP}
    v_mov_b32 v{TMP+3}, s5
    v_add_co_u32 v{TMP+2}, vcc, s4, v{TMP}
    s_nop 1
    v_addc_co_u32 v{TMP+3}, vcc, 0, v{TMP+3}, vcc
    global_load_dword v{vZ+2}, v[{TMP+2}:{TMP+3}], off
"""
    return s

def setup_attn():
    t = SP
    s = f"""s_mov_b32 s{sC}, {CSCALE:#x}
s_mov_b32 s{sLo}, {L_LO:#x}
v_mov_b32 v{ONEV}, 1
s_lshl_b32 s6, s{sB}, 4
v_mov_b32 v{vIR}, s6
v_add_u32 v{t}, s{sLw}, v{vLN}
v_lshl_add_u32 v{vZ}, v{t}, 8, s6
"""
    s += f"""v_and_b32 v{t}, 1, v{vG}
v_lshlrev_b32 v{t}, 1, v{t}
v_lshrrev_b32 v{t+1}, 1, v{vG}
v_or_b32 v{t}, v{t}, v{t+1}
v_xor_b32 v{t}, v{t}, v{vR}
v_lshrrev_b32 v{t+1}, 2, v{vR}
v_and_b32 v{t+2}, 3, v{vR}
v_lshlrev_b32 v{t+3}, 12, v{t+1}
v_lshl_add_u32 v{t+3}, v{t+2}, 8, v{t+3}
v_lshl_add_u32 v{t}, v{t}, 4, v{t+3}
s_lshr_b32 s4, s{sXw}, 4
v_xor_b32 v{aK}, s4, v{t}
v_add_u32 v{aK8}, s{sW10}, v{aK}
"""
    for k in range(1, 4): s += f"v_xor_b32 v{aK+k}, {64*k}, v{aK}\nv_xor_b32 v{aK8+k}, {64*k}, v{aK8}\n"
    for k in range(12): s += f"v_mov_b32 v{NEGM+k}, 0\n"
    s += f"""v_cmp_eq_u32 vcc, 0, v{t+2}
v_mov_b32 v{t+4}, 0x3f803f80
v_cndmask_b32 v{t+4}, v{NEGM}, v{t+4}, vcc
"""
    for k in range(4): s += f"v_accvgpr_write_b32 a{ONES+k}, v{t+4}\n"
    s += f"""v_add_u32 v{aL16}, {X8R}, v{vL16}
s_lshr_b32 s3, s{sW}, 1
s_lshl_b32 s3, s3, 10
s_and_b32 s7, s{sW}, 1
s_lshl_b32 s7, s7, 3
s_add_u32 s3, s3, s7
s_add_u32 s3, s3, {P8R}
v_add_u32 v{aP8w}, s3, v{vL16}
"""
    for k in range(4): s += f"v_add_u32 v{aQ8+k}, s{sXw+k}, v{aL16}\n"
    return s

def setup_scalar(opt):
    s = f"""s_lshl_b32 s3, s{sB}, 2
s_add_u32 s3, s3, s{sHG}
s_mul_i32 s3, s3, {8 * 36864}
s_lshl_b32 s4, s{sW}, 13
s_add_u32 s3, s3, s4
s_lshl_b32 s5, s{sHG}, 20
s_lshl_b32 s6, s{sJ}, 8
s_add_u32 s5, s5, s6
"""
    for n in range(4):
        if n == 0 or opt.get('orot', 1): s += f"s_xor_b32 s6, s{sJ}, {n}\n"
        else: s += f"s_cmp_le_u32 s{sJ}, {n - 1}\ns_cselect_b32 s6, {n}, {n - 1}\n"
        s += f"""s_mul_i32 s7, s6, 73728
s_add_u32 s{sOn+n}, s3, s7
s_lshl_b32 s7, s6, 18
s_add_u32 s{sWOn+n}, s5, s7
"""
    for i in range(4): s += f"s_add_u32 s{sOs+i}, s{sOn}, s{sXw+i}\n"
    s += f"""s_and_b32 s6, s{sB}, 7
s_lshl_b32 s6, s6, 2
s_add_u32 s6, s6, s{sW}
s_lshl_b32 s7, s6, 15
s_add_u32 s{sPFo}, s5, s7
s_lshl_b32 s3, s{sB}, 2
s_add_u32 s3, s3, s{sJ}
s_lshl_b32 s3, s3, 2
"""
    for e in range(4):
        s += f"""s_xor_b32 s4, s{sHG}, {e ^ 3}
s_add_u32 s4, s4, s3
s_lshl_b32 s4, s4, 2
s_add_u32 s4, s4, s{sW}
s_mul_i32 s4, s4, 6144
s_add_u32 s{sMB+e}, s4, {WS_MB + (e % 3) * 2048}
"""
    s += f"""s_xor_b32 s4, s{sHG}, s{sW}
s_add_u32 s4, s4, s3
s_lshl_b32 s4, s4, 12
s_add_u32 s4, s4, {WS_M8}
s_add_u32 s{sM8s}, s4, s{sW10}
s_cmp_eq_u32 s{sW}, 0
s_cselect_b32 s{sM8r}, s4, {OOB}
s_mul_i32 s4, s{sB}, 147456
s_lshl_b32 s5, s{sJ}, 8
s_add_u32 s4, s4, s5
s_xor_b32 s5, s{sHG}, s{sW}
s_xor_b32 s6, s5, 3
s_lshl_b32 s6, s6, 6
s_lshl_b32 s7, s{sW}, 15
s_add_u32 s6, s6, s7
s_add_u32 s{sOut}, s4, s6
s_lshl_b32 s5, s5, 6
s_add_u32 s4, s4, s5
s_add_u32 s4, s4, 131072
s_cmp_eq_u32 s{sW}, 0
s_cselect_b32 s{sO8ut}, s4, {OOB}
"""
    return s

def setup_mid():
    return f"""s_lshl_b32 s3, s{sW}, 2
s_add_u32 s4, s3, {CKR}
v_add_u32 v{aCK}, s4, v{vL16}
s_lshl_b32 s5, s{sW}, 13
s_sub_u32 s5, 32768, s5
s_add_u32 s5, s5, s{sXw+3}
v_add_u32 v{vL8}, s5, v{vL16}
v_lshlrev_b32 v{vFW}, 21, v{vL16}
v_and_b32 v{vFO}, 48, v{vL16}
s_and_b32 s6, s{sFl}, {0xffffffff ^ (3 << 11):#x}
v_lshl_add_u32 v{vFO}, v{vFO}, 7, s6
v_bfe_u32 v{vW}, v{vV}, 8, 2
v_add_u32 v{vW}, s3, v{vW}
v_and_b32 v{vF}, 0xf0, v{vV}
v_lshl_add_u32 v{vW}, v{vW}, 10, v{vF}
"""

def setup_final():
    t = vT
    return f"""v_bfe_u32 v{t}, v{vL16}, 4, 2
s_and_b32 s3, s{sFl}, {0xffffffff ^ (3 << 9):#x}
v_lshl_add_u32 v{t+1}, v{t}, 9, s3
v_mul_u32_u24 v{t+2}, 640, v{t}
v_xor_b32 v{t+2}, s{sFl}, v{t+2}
s_cmp_eq_u32 s{sW}, 0
s_cselect_b32 s4, 64, 0
v_and_b32 v{t+3}, s4, v{vL16}
v_cmp_ne_u32 vcc, 0, v{t+3}
v_cndmask_b32 v{vFP}, v{t+1}, v{t+2}, vcc
v_bfe_u32 v{t+4}, v{vL16}, 4, 4
v_lshlrev_b32 v{vOUT}, 10, v{t+4}
v_bfe_u32 v{t+5}, v{vL16}, 8, 1
v_lshl_add_u32 v{vOUT}, v{t+5}, 5, v{vOUT}
v_bfe_u32 v{t+5}, v{vL16}, 9, 1
v_lshl_add_u32 v{vOUT}, v{t+5}, 4, v{vOUT}
v_mov_b32 v{t+6}, 0
v_lshrrev_b32 v{t+4}, 2, v{t+4}
v_lshrrev_b32 v{t+5}, 8, v{vL16}
v_and_b32 v{t+7}, 16, v{vL16}
v_mov_b32 v{t+8}, 0x3f80
v_lshlrev_b32 v{t+7}, v{t+7}, v{t+8}
v_cmp_eq_u32 vcc, v{t+4}, v{t+5}
v_cndmask_b32 v{t+7}, v{t+6}, v{t+7}, vcc
v_cmp_gt_u32 vcc, 2, v{t}
v_cndmask_b32 v{t+8}, v{t+6}, v{t+7}, vcc
v_cndmask_b32 v{t+7}, v{t+7}, v{t+6}, vcc
v_accvgpr_write_b32 a{SELX}, v{t+8}
v_accvgpr_write_b32 a{SELX+1}, v{t+7}
v_accvgpr_write_b32 a{SELX+2}, 0
v_accvgpr_write_b32 a{SELX+3}, 0
v_accvgpr_write_b32 a{SELY}, 0
v_accvgpr_write_b32 a{SELY+1}, 0
v_accvgpr_write_b32 a{SELY+2}, v{t+8}
v_accvgpr_write_b32 a{SELY+3}, v{t+7}
"""

def emit(g, lin, opt):
    st = opt.get('stamps')
    n = [0]
    def stamp():
        k = n[0]; n[0] += 1
        a = 88 + 4 * (k & 1); b = 88 + 4 * ((k + 1) & 1)
        t = f"    s_memrealtime s[{a}:{a+1}]\n    s_memtime s[{a+2}:{a+3}]\n"
        if k > 0: t += f"    v_writelane_b32 v{STA}, s{b}, {k-1}\n    v_writelane_b32 v{STB}, s{b+2}, {k-1}\n"
        return t
    W = "    s_waitcnt lgkmcnt(0)\n"
    s = prologue(opt)
    if st: s = s.replace(";STAMP\n", stamp()) + stamp()
    nl = 0
    fill = [l + "\n" for l in prologue2(opt).split("\n") if l.strip()]
    n2 = len(fill)
    warm = "".join(f"s_buffer_load_dword s100, {rs('s', sb, 4)}, s{so}\n" for sb, so in ((SWO, sWOn), (SWS, sOn), (SWS, sOn + 2), (SWS, sMR), (SWS, sM8s), (SOUT, sOut))) if opt.get('tlb', 1) > 1 else ""
    for l in ("".join(f"s_xor_b32 s{sXw+i}, s{sXw}, {i << 10}\n" for i in range(1, 4)) + setup_scalar(opt) + warm + setup_attn()).split("\n"):
        if not l.strip(): continue
        if l.startswith("s_cselect"): fill[-1] += "    " + l + "\n"
        elif l.startswith("v_cndmask"): fill.append("    s_nop 1\n    " + l + "\n")
        else: fill.append("    " + l + "\n")
    if opt.get('kvsame'): s = s.replace(f"s_lshl_b32 s{sKV}, s5, 17", f"s_mov_b32 s{sKV}, 0")
    if opt.get('tlb', 1):
        t = f"    s_lshl_b32 s3, s{sW}, 16\n    s_add_u32 s3, s3, s{sKV}\n    s_buffer_load_dword s100, {rs('s', SK, 4)}, s3\n    s_buffer_load_dword s101, {rs('s', SV, 4)}, s3\n"
        s = s.replace(";TLB\n", t)
    p2at = opt.get('p2at', 10); per = opt.get('fillper', 12)
    for o in lin:
        if fill and o.kind not in ('L', 'S', 'N'): s += "".join(fill); fill = []
        if fill and o.kind == 'L' and nl >= p2at:
            k = n2 if nl == p2at else per
            s += "".join(fill[:k]); fill = fill[k:]
        nl += o.kind == 'L'
        txt = o.text
        s += (txt if o.kind == 'X' else "    " + txt) + "\n"
        if st and o.kind == 'B': s += stamp()
        if st and ('offset:8 sc1' in txt and o.kind == 'ST' or 'L_ret_pp' in txt): s += W + stamp()
    if st:
        s += W + stamp() + "    s_waitcnt vmcnt(0) lgkmcnt(0)\n" + stamp() + W + stamp()
        s += f"""    s_lshl_b32 s3, s2, 2
    s_add_u32 s3, s3, s{sW}
    s_lshl_b32 s3, s3, 9
    s_add_u32 s3, s3, 0x3000000
    s_mov_b32 s{SWS+2}, 0x4000000
    v_lshrrev_b32 v1, 2, v{vL16}
    buffer_store_dword v{STA}, v1, s[{SWS}:{SWS+3}], s3 offen
    buffer_store_dword v{STB}, v1, s[{SWS}:{SWS+3}], s3 offen offset:256
"""
        print("; stamps", n[0] - 1, file=sys.stderr)
        if opt.get('dbgwg') is not None:
            s += f"""    s_cmp_lg_u32 s2, {opt['dbgwg']}
    s_cbranch_scc1 L_exit
    s_cmp_lg_u32 s{sW}, 0
    s_cbranch_scc1 L_exit
    v_readlane_b32 s3, v{STA}, 0
    v_lshrrev_b32 v1, 1, v1
    v_subrev_u32 v1, {2 * opt.get('dbgoff', 0)}, v1
    s_mov_b32 s{SDBG+2}, 64
    s_nop 3
    v_subrev_u32 v{STA}, s3, v{STA}
    buffer_store_short v{STA}, v1, s[{SDBG}:{SDBG+3}], 0 offen
"""
    s += "    s_endpgm\n" + g.tail + "L_restart:\n" + lane_setup() + "    s_branch L_go\nL_exit:\n    s_endpgm\n"
    return s

def build(opt):
    tmap = None
    for it in range(2):
        g = Gen(opt, tmap)
        g.q0(); g.attention(); g.wphase()
        g.final()
        lin = g.finish()
        tmap = [0.0]
        for c in g.res + [16]:
            tmap.append(tmap[-1] + (16 + (c - 16) * opt.get('ovw', 70) / 100) * opt.get('nsg', 108) / 160)
    body = emit(g, lin, opt)
    s = "; fused MHA block: Q projection, attention, output projection and reduction in one launch\n"
    s += "; @launch grid=(256,1,1) block=(256,1,1) lds=163840\n"
    s += '.amdgcn_target "amdgcn-amd-amdhsa--gfx950"\n.text\n' + body
    s += f""".section .rodata,"a"
.p2align 6
.amdhsa_kernel {KNAME}
  .amdhsa_next_free_vgpr 512
  .amdhsa_next_free_sgpr 102
  .amdhsa_accum_offset 256
  .amdhsa_group_segment_fixed_size 0
  .amdhsa_kernarg_size 64
  .amdhsa_user_sgpr_count 2
  .amdhsa_user_sgpr_kernarg_segment_ptr 1
  .amdhsa_system_sgpr_workgroup_id_x 1
.end_amdhsa_kernel
"""
    return s

if __name__ == "__main__":
    opt = {}
    out = sys.argv[1]
    for a in sys.argv[2:]:
        k, v = a.split("=")
        opt[k] = int(v) if v.lstrip('-').isdigit() else v.replace('+', ' ')
    open(out, "w").write(build(opt))
```

```python
import sys, math, struct
from sched import *

KNAME = "standalone__mha_block_cached__near_ridge_kernel"
f2u = lambda x: struct.unpack("<I", struct.pack("<f", x))[0]
ACC1, OACC, NEGM, QF = 4, 76, 160, 172
aK, aK8, aV, aVk, aX8 = 204, 208, 212, 220, 228
aL16, aP8w, vK, vV, vWQ, vWO, RCP, vL16 = 232, 233, 234, 235, 236, 237, 238, 241
vDUM, vIR, vT1 = 150, 151, 152
STA, STB = 148, 149
ONEV, vFW, vOUT = 0, 242, 243
TMP = 244
vL8, vFO, vINI, vF = 252, 253, 254, 255
aCK, vPF, vFP = 1, 2, 3
vX, aXo = OACC, OACC + 4
XF, FB, NFB, X8B, P8F, QF8, ONES, SELX, SELY, LACC = 0, 128, 12, 176, 192, 200, 216, 220, 224, 228
SX, SK, SV, SWQ, SWO, SWS, SOUT, SDBG = 8, 12, 16, 20, 24, 28, 32, 84
sW, sB, sH0, sLw, sKV, sX8, sC, sD, sT, sHG, sJ, sFl = 36, 37, 38, 39, 40, 41, 42, 43, 44, 45, 46, 47
sOs, sXn, sWQn, sWOn, sOn = 48, 52, 56, 60, 64
sMB, sMR, sM8s, sM8r, sOut, sO8ut, sThr, sLo, sCnt, sPFq, sPFo, sT2 = 68, 71, 72, 73, 74, 75, 76, 78, 79, 96, 97, 98
sXw = 80
KR, VR, X8R, MISC = 0, 65536, 131072, 147456
P8R, Q8R, CKR = MISC, MISC + 4096, MISC + 8192
WS_MB, WS_M8, WS_FL, WS_SIZE = 0x1400000, 0x1C00000, 0x1F00000, 0x2000000
OOB = 0x7f000000
CSCALE = f2u(math.log2(math.e) / math.sqrt(128.0))
L_LO, L_HI = f2u(2.0 ** -12), f2u(2.0 ** 30)

class Gen:
    def __init__(self, opt):
        self.p = p = Prog(); self.opt = opt
        p.LAT_DS = opt.get('lat', 6); p.WIN = opt.get('win', 4); p.ESP = opt.get('esp', 20) / 10
        p.LDSCAP = opt.get('ldscap', 3); p.TTW = opt.get('ttw', 2); p.LAT_G = opt.get('latg', 70)
        p.VMW = opt.get('vmw', 60); p.DSP = opt.get('dsp', 10) / 10; p.VSP = opt.get('vsp', 5) / 10; p.OVF = opt.get('ovf', 1)
        self.fb = 0; self.pieces = []; self.bars = []; self.slotseq = {'K': 0, 'V': 0}
        self.ring_rd = []; self.marks = []; self.tail = ""; self.pend = []
    def M(self, d, a, b, c, f='v'):
        o = Op('M', f"v_mfma_f32_16x16x32_bf16 {rs(f, d, 4)}, {rs(a[0], a[1], 4)}, {rs(b[0], b[1], 4)}, " + ("0" if c is None else rs(f, c, 4)),
               rd=R(*a, 4) + R(*b, 4) + ([] if c is None else R(f, c, 4)), wr=R(f, d, 4))
        o.ab = R(*a, 4) + R(*b, 4); o.c = [] if c is None else R(f, c, 4)
        return self.p.add(o)
    def D(self, dst, areg, off, lds, bar=None, **kw):
        o = Op('DS', f"ds_read_b128 {rs(dst[0], dst[1], 4)}, v{areg} offset:{off}", rd=R('v', areg), wr=R(*dst, 4), lds_rd=lds, **kw)
        self.p.add(o)
        if bar: self.p.dep(bar, o, 0); self.ring_rd.append(o)
        return o
    def T(self, dst, areg, off, lds, bar):
        o = Op('DS', f"ds_read_b64_tr_b16 {rs('a', dst, 2)}, v{areg} offset:{off}", rd=R('v', areg), wr=R('a', dst, 2), lds_rd=lds)
        self.p.add(o); self.p.dep(bar, o, 0); self.ring_rd.append(o)
        return o
    def V(self, text, rd, wr, kind='V', **kw):
        return self.p.add(Op(kind, text, rd=rd, wr=wr, **kw))
    def S(self, text, rd, wr, **kw):
        return self.p.add(Op('S', text, rd=rd, wr=wr, **kw))
    def G(self, dst, n, vreg, srd, soff, imm, flags, **kw):
        w = {1: "dword", 4: "dwordx4"}[n]
        so = f"s{soff}" if soff is not None else "0"
        return self.p.add(Op('G', f"buffer_load_{w} {rs(dst[0], dst[1], n)}, v{vreg}, {rs('s', srd, 4)}, {so} offen offset:{imm} {flags}",
                             rd=R('v', vreg) + ([] if soff is None else R('s', soff)), wr=R(*dst, n), **kw))
    def ST(self, reg, n, vreg, srd, soff, imm, flags, **kw):
        w = {1: "dword", 4: "dwordx4"}[n]
        return self.p.add(Op('ST', f"buffer_store_{w} {rs('v', reg, n)}, v{vreg}, {rs('s', srd, 4)}, s{soff} offen offset:{imm} {flags}",
                             rd=R('v', reg, n) + R('v', vreg) + R('s', soff), **kw))
    def bar(self, lead=None):
        if lead is None: lead = self.opt.get('lead', 9)
        pin = max(self.p.nm() - lead, -1)
        if self.bars: pin = max(pin, self.bars[-1].pin)
        o = Op('B', "s_barrier", pin=pin)
        self.p.add(o)
        o.drain = set(self.ring_rd); self.ring_rd = []
        for r in o.drain: o.needs.append(r); self.p.dep(r, o, self.opt.get('drain', 4))
        if self.bars: self.p.dep(self.bars[-1], o, 0)
        self.bars.append(o)
        for minpin, fn in list(self.pend):
            if pin >= minpin: self.pend.remove((minpin, fn)); fn(o)
        return o
    def nextfb(self):
        r = FB + 4 * self.fb; self.fb = (self.fb + 1) % NFB; return r
    def slot(self, part):
        s = [3, 1, 2, 0][self.slotseq[part] % 4]; self.slotseq[part] += 1; return s
    def piece(self, cells, content, ldsreg, ldsoff, src, bar, key=None, gate=None):
        self.pieces.append(dict(cells=cells, content=content, ldsreg=ldsreg, ldsoff=ldsoff, src=src, bar=bar, key=key, gate=gate))
    def item(self, part, sl, content, bar, src, key=None):
        for j in range(4):
            self.piece([(part, sl, j)], content, sLw, (KR if part == 'K' else VR) + sl * 16384 + j * 1024, src(j), bar, key)
    def poll(self, name, vreg, srd, soff, imm, want, est, after=(), lag=0):
        lat = self.p.LAT_G; self.p.LAT_G = lag
        cmp = "v_cmp_gt_u32" if want > 1 else "v_cmp_ne_u32"
        g = self.G(('v', vF), 1, vreg, srd, soff, imm, "sc1", est=est, soft=est)
        for a in after: self.p.dep(a, g, 0)
        c = self.V(f"{cmp} vcc, {want}, v{vF}\n    s_cbranch_vccnz L_spin_{name}\nL_ret_{name}:", R('v', vF), [('vcc', 0)], kind='C', cost=2,
                   soft=est + lag)
        self.p.LAT_G = lat
        self.tail += f"""L_spin_{name}:
    s_mov_b32 s{sCnt}, 0
L_spin2_{name}:
    {g.text}
    s_waitcnt vmcnt(0)
    {cmp} vcc, {want}, v{vF}
    s_cbranch_vccz L_ret_{name}
    s_add_u32 s{sCnt}, s{sCnt}, 1
    s_cmp_lt_u32 s{sCnt}, 0x40000
    s_cbranch_scc0 L_ret_{name}
    s_sleep 1
    s_branch L_spin2_{name}
"""
        return c

    def proj(self, name, first=True, gate=None, own=None):
        p = self.p; isq = name[0] == 'Q'; ph = int(name[1]); opt = self.opt
        wf = opt.get('wflags', ''); xf = opt.get('xflags', '')
        self.marks.append((name, p.nm()))
        xslots = [0, 2, 0, 1]; wslots = [1, 3, 2, 0]
        start = p.nm()
        for n in range(4):
            b = self.bar()
            if name == 'Q0':
                est = -1 if n == 0 else start + (n - 1) * 72 + opt.get('xest', 30)
                for a, part in enumerate('KV'):
                    c = ('X', n, a)
                    self.item(part, xslots[n], c, None, lambda j: (SX, vX + j, sXn + n, a * 16384 + j * 1024, xf), key=(est, 0, a))
                    for k in range(4):
                        self.D(('a', XF + (a * 16 + n * 4 + k) * 4), aXo + a * 4 + k, xslots[n] * 16384,
                               [((part, xslots[n], j), c) for j in range(4)], private=True, est=est, soft=est + 8)
                if n == 0:
                    for j in range(4):
                        self.piece([('X8', blk, j) for blk in range(4)], 'X8', sLw, X8R + j * 1024, (SX, vX + j, sX8, j * 1024, xf), b, key=(-1, 0, 2))
            if not isq:
                gt = own if n == 0 else gate
                self.piece([('X8', n, j) for j in range(4)], (name, n), sXw + 3, X8R + n * 4096, (SWS, vL8, sOn + n, ph * 36864, 'sc1'), b, gate=gt)
                est = p.nm() - opt.get('gest', 110)
                for q in range(2):
                    self.S(f"s_add_u32 s{sT2}, s{sOn+n}, {ph * 36864 + q * 4096}", R('s', sOn + n), R('s', sT2), est=est - 4)
                    for s in range(4):
                        g = self.G(('a', XF + (q * 16 + n * 4 + s) * 4), 4, vL16, SWS, sT2, s * 1024, 'sc1', est=est + 3 * (4 * q + s))
                        for x in gt:
                            p.dep(x, g, 0 if x.kind == 'C' else 30)
                            if x.kind == 'ST': g.needs.append(x)
            sl = []; cs = []
            for hs, part in enumerate('KV'):
                sl.append(wslots[n] if name == 'Q0' else self.slot(part)); cs.append((name, n, hs))
                if isq: self.item(part, sl[hs], cs[hs], b, lambda j: (SWQ, vWQ, sWQn + n, (hs * 64 + 4 * j) * 8192 + ph * 256, wf))
                else: self.item(part, sl[hs], cs[hs], b, lambda j: (SWO, vWO, sWOn + n, (ph * 128 + 64 * hs + 16 * j) * 1024, wf))
            for k in range(4):
                if isq: self.D(('a', X8B + 4 * k), aX8 + k, n * 4096, [(('X8', n, j), 'X8') for j in range(4)], bar=b)
                else: self.D(('a', X8B + 4 * k), aL16, (n * 4 + k) * 1024, [(('X8', n, k), (name, n))], bar=b)
            for t in range(8):
                f = []
                for k in range(4):
                    hs, u = k >> 1, k & 1
                    f.append(self.nextfb())
                    for a in range(2):
                        self.T(f[k] + 2 * a, (aVk, aV)[hs] + t, sl[hs] * 16384 + (2 * u + a) * 1024, [(('KV'[hs], sl[hs], 2 * u + a), cs[hs])], b)
                for q in range(3 if t < 2 else 2):
                    d = ACC1 + (q * 8 + t) * 4
                    for i, k in enumerate(range(4) if q != 1 else range(3, -1, -1)):
                        bop = ('a', XF + (q * 16 + n * 4 + k) * 4) if q < 2 else ('a', X8B + 4 * k)
                        self.M(d, ('a', f[k]), bop, None if (first and n == 0 and i == 0) else d)
                if n == 3 and t & 1: self.proj_out(name, t >> 1)
    def pack(self, src, dst, scale=None, swap=False):
        if scale is not None:
            for i in range(8):
                self.V(f"v_mul_f32 v{src+i}, {scale[0]}{scale[1]}, v{src+i}", R('v', src + i) + [scale], R('v', src + i))
        for i in range(4):
            self.V(f"v_cvt_pk_bf16_f32 v{dst+i}, v{src+2*i}, v{src+2*i+1}", R('v', src + 2 * i, 2), R('v', dst + i))
        if swap:
            for i in range(2):
                self.V(f"v_permlane16_swap_b32 v{dst+i}, v{dst+2+i}", [('v', dst + i), ('v', dst + 2 + i)], [('v', dst + i), ('v', dst + 2 + i)], kind='P')
    def proj_out(self, name, s):
        if name[0] == 'Q':
            h = int(name[1])
            if s == 0:
                self.pack(ACC1 + 64, TMP, ('s', sC), True)
                self.q8w = self.p.add(Op('DW', f"ds_write_b128 v{TMP+4}, {rs('v', TMP, 4)} offset:{Q8R - X8R}", rd=R('v', TMP, 5), lds_wr=[(('Q8', 0), ('Q8', h))]))
            for q in range(2):
                self.pack(ACC1 + (q * 8 + 2 * s) * 4, QF + (q * 4 + s) * 4, ('s', sC), True)
        elif name == 'W1' and s < 3:
            if s == 0:
                self.pst = []
                self.pack(ACC1 + 64, TMP)
                self.pst.append(self.ST(TMP, 4, vL16, SWS, sM8s, 0, 'sc1'))
            for q in range(2):
                r = ACC1 + (q * 8 + 2 * s) * 4
                self.pack(r, r)
                self.pst.append(self.ST(r, 4, vL16, SWS, sMB + s, q * 1024, 'sc1'))
    def flag(self, word, stores, after=(), lag=40):
        f = self.ST(ONEV, 1, vFW, SWS, sFl, 4 * word, 'sc1')
        for s in stores: f.needs.append(s); self.p.dep(s, f, lag)
        for a in after: self.p.dep(a, f, 0)
        f.soft = -1000
        return f
    def attn(self, h):
        p = self.p; opt = self.opt
        self.marks.append(("A%d" % h, p.nm()))
        Sr = lambda j, q: ACC1 + (j * 2 + q) * 4
        S8 = ACC1 + 32; P8o = ACC1 + 60
        Pr = lambda u, q: ACC1 + 36 + ((u % 3) * 2 + q) * 4
        kv = opt.get('kvflags', 'nt')
        start = p.nm()
        b = self.bar(); b.needs.append(self.q8w); p.dep(self.q8w, b, 4)
        for s in range(4):
            self.D(('a', QF8 + 4 * s), TMP + 4 + s, Q8R - X8R, [(('Q8', 0), ('Q8', h))], bar=b)
        self.V(f"s_cmp_eq_u32 s{sThr+h}, -1\n    s_cbranch_scc1 L_max{h}\nL_maxret{h}:", R('v', QF, 32) + R('a', QF8, 16), R('v', ACC1, 36) + R('v', NEGM, 12), kind='C', cost=2)
        self.tail += maxpass(h)
        st = {}
        def kitem(i, b):
            sl = self.slot('K'); c = ('K', h, i)
            self.item('K', sl, c, b, lambda j: (SK, vK, sKV, h * 131072 + i * 16384 + j * 1024, kv))
            st['k'] = (sl, c, b)
        def vitem(i, b):
            sl = self.slot('V'); c = ('V', h, i)
            self.item('V', sl, c, b, lambda j: (SV, vV, sKV, h * 131072 + i * 16384 + j * 1024, kv))
            st['v'] = (sl, c, b)
        def softmax(src, dst):
            for i in range(4):
                self.V(f"v_exp_f32 v{src+i}, v{src+i}", R('v', src + i), R('v', src + i), kind='E')
            for i in range(2):
                self.V(f"v_cvt_pk_bf16_f32 v{dst+i}, v{src+2*i}, v{src+2*i+1}", R('v', src + 2 * i, 2), R('v', dst + i))
        def A8(i):
            sl, c, b = st['k']
            for s in range(4):
                f = self.nextfb()
                self.D(('a', f), aK8 + s, sl * 16384, [(('K', sl, j), c) for j in range(4)], bar=b)
                self.M(S8, ('a', f), ('a', QF8 + 4 * s), NEGM + 8 if s == 0 else S8)
            softmax(S8, P8o)
            st['dw'] = p.add(Op('DW', f"ds_write_b64 v{aP8w}, {rs('v', P8o, 2)} offset:{(i & 1) * 2048}", rd=R('v', P8o, 2) + R('v', aP8w),
                                lds_wr=[(('P8', i & 1), ('P8', h, i))]))
            p.dep(b, st['dw'], 0)
        def A(u):
            sl, c, b = st['k']
            for jj in range(2):
                j = (u & 1) * 2 + jj
                f = []
                for s in range(4):
                    f.append(self.nextfb())
                    self.D(('a', f[s]), aK + s, sl * 16384 + j * 1024, [(('K', sl, j), c)], bar=b)
                for q in range(2):
                    for i, s in enumerate(range(4) if q == 0 else range(3, -1, -1)):
                        self.M(Sr(j, q), ('a', f[s]), ('v', QF + (q * 4 + s) * 4), NEGM + 4 * q if i == 0 else Sr(j, q))
                    softmax(Sr(j, q), Pr(u, q) + 2 * jj)
        def B(u):
            sl, c, b = st['v']; uu = u & 1; i = u >> 1
            z = u == 0
            p8 = P8F + 4 * uu
            self.D(('a', p8), aL16, P8R - X8R + (i & 1) * 2048 + uu * 1024, [(('P8', i & 1), ('P8', h, i))], bar=b)
            for t in range(8):
                f = self.nextfb()
                for a in range(2):
                    self.T(f + 2 * a, aV + t, sl * 16384 + (2 * uu + a) * 1024, [(('V', sl, 2 * uu + a), c)], b)
                for q in range(2):
                    d = OACC + (q * 8 + t) * 4
                    self.M(d, ('a', f), ('v', Pr(u, q)), None if z else d)
                if t >= 6:
                    d = OACC + 64 + (t - 6) * 4
                    self.M(d, ('a', f), ('a', p8), None if z else d)
                if t in (1, 3):
                    q = t >> 1; d = LACC + 4 * q
                    self.M(d, ('a', ONES), ('v', Pr(u, q)), None if z else d, 'a')
                if t == 5:
                    d = LACC + 8
                    self.M(d, ('a', ONES), ('a', p8), None if z else d, 'a')
        def Blast():
            sl, c, b = st['v']
            for uu in range(2):
                self.D(('a', P8F + 4 * uu), aL16, P8R - X8R + 2048 + uu * 1024, [(('P8', 1), ('P8', h, 7))], bar=b)
            bop = lambda uu, q: ('v', Pr(14 + uu, q)) if q < 2 else ('a', P8F + 4 * uu)
            def frag(t, uu):
                f = self.nextfb()
                for a in range(2):
                    self.T(f + 2 * a, aV + t, sl * 16384 + (2 * uu + a) * 1024, [(('V', sl, 2 * uu + a), c)], b)
                return f
            acc = lambda t, q: OACC + (q * 8 + t) * 4 if q < 2 else OACC + 64 + (t - 6) * 4
            nh = opt.get('nh', 5)
            for t in range(nh):
                f = frag(t, 0)
                for q in range(2): self.M(acc(t, q), ('a', f), bop(0, q), acc(t, q))
                if t < 3: self.M(LACC + 4 * t, ('a', ONES), bop(0, t), LACC + 4 * t, 'a')
            for q in (2, 0, 1): self.M(LACC + 4 * q, ('a', ONES), bop(1, q), LACC + 4 * q, 'a')
            for t in range(8):
                us = [1] if t < nh else [0, 1]
                f = {uu: frag(t, uu) for uu in us}
                for q in range(3 if t >= 6 else 2):
                    for uu in (us if q != 1 else us[::-1]): self.M(acc(t, q), ('a', f[uu]), bop(uu, q), acc(t, q))
        kitem(0, b)
        A8(0); A(0); A(1)
        for i in range(8):
            b = self.bar(); b.needs.append(st['dw']); p.dep(st['dw'], b, 4)
            vitem(i, b)
            if i < 7: kitem(i + 1, b)
            if i == 1:
                e = p.nm()
                if h == 0: self.G(('v', vDUM), 1, vPF, SWQ, sPFq, 0, '', est=e, soft=e)
                else:
                    self.V(f"v_lshrrev_b32 v{vPF}, 3, v{vPF}", R('v', vPF), R('v', vPF))
                    self.V(f"v_and_b32 v{vT1}, 16, v{vL16}", R('v', vL16), R('v', vT1))
                    self.V(f"v_mad_u32_u24 v{vPF}, v{vT1}, 7, v{vPF}", R('v', vPF) + R('v', vT1), R('v', vPF))
                    self.G(('v', vDUM), 1, vPF, SWO, sPFo, 0, '', est=e, soft=e)
            if h == 0 and i == 2:
                e = p.nm()
                o = p.add(Op('ST', f"buffer_atomic_add v{ONEV}, v{vINI}, {rs('s', SDBG, 4)}, 0 offen sc1", rd=R('v', ONEV) + R('v', vINI), est=e, soft=e))
                p.dep(b, o, 0)
            if h == 1 and i == 0:
                c0 = self.poll('ini', vIR, SDBG, None, 0, 16, p.nm(), lag=165)
            if h == 1 and i == 3:
                self.gate0 = self.poll('o0', vFO, SWS, None, 0, 1, p.nm(), after=[c0], lag=165)
            if i == 7: Blast(); break
            B(2 * i); A8(i + 1); A(2 * i + 2); B(2 * i + 1); A(2 * i + 3)
        for q in range(3):
            self.V(f"v_accvgpr_read_b32 v{RCP+q}, a{LACC+4*q}", R('a', LACC + 4 * q), R('v', RCP + q), soft=p.nm() - 24)
            self.V(f"v_subrev_u32 v{TMP+q}, s{sLo}, v{RCP+q}", R('v', RCP + q) + R('s', sLo), R('v', TMP + q), soft=p.nm() - 24)
        self.V(f"v_max3_u32 v{TMP}, v{TMP}, v{TMP+1}, v{TMP+2}", R('v', TMP, 3), R('v', TMP), soft=p.nm() - 24)
        cw = p.add(Op('DW', f"ds_write_b32 v{aCK}, v{TMP}", rd=R('v', TMP) + R('v', aCK), lds_wr=[(('CK', 0), ('CK', h))], soft=p.nm() - 24))
        sts = []
        for q in range(3):
            self.V(f"v_rcp_f32 v{RCP+q}, v{RCP+q}", R('v', RCP + q), R('v', RCP + q), kind='E')
        for s in range(4):
            for q in range(2):
                r = OACC + (q * 8 + 2 * s) * 4
                self.pack(r, r, ('v', RCP + q))
                self.S(f"s_add_u32 s{sT}, s{sOs+s}, {h * 36864 + q * 4096}", R('s', sOs + s), R('s', sT))
                sts.append(self.ST(r, 4, vL16, SWS, sT, 0, 'sc1', soft=p.nm() + opt.get('osoft', 9) * len(sts), firm=(h == 1)))
        self.pack(OACC + 64, OACC + 64, ('v', RCP + 2))
        self.S(f"s_add_u32 s{sT}, s{sOn}, {h * 36864}", R('s', sOn), R('s', sT))
        sts.append(self.ST(OACC + 64, 4, vL8, SWS, sT, 0, 'sc1', soft=p.nm() + opt.get('osoft', 9) * 8, firm=(h == 1)))
        self.ost = sts
        def check(b):
            b.needs.append(cw); p.dep(cw, b, 4)
            self.D(('v', TMP), aL16, CKR - X8R, [(('CK', 0), ('CK', h))], bar=b, soft=b.pin)
            self.V(f"v_max3_u32 v{TMP}, v{TMP}, v{TMP+1}, v{TMP+2}", R('v', TMP, 3), R('v', TMP), soft=b.pin + 8)
            self.V(f"v_max_u32 v{TMP}, v{TMP}, v{TMP+3}", R('v', TMP, 4), R('v', TMP), soft=b.pin + 8)
            c = self.V(f"v_cmp_lt_u32 vcc, s{sThr+h}, v{TMP}\n    s_cbranch_vccnz L_fail{h}", R('v', TMP) + R('s', sThr + h), [('vcc', 0)], kind='C', cost=2, soft=b.pin + 9)
            fl = self.flag(h, sts, after=[c], lag=opt.get('flag', 40) if h else 120)
            if h == 1:
                self.gate1 = self.poll('o1', vFO, SWS, None, 4, 1, b.pin + opt.get('p1est', 110), after=[fl], lag=opt.get('p1lag', 50))
        self.pend.append((p.nm() + opt.get('ckat', 8), check))
        self.tail += f"L_fail{h}:\n" + "".join(f"    s_mov_b32 s{sThr+k}, -1\n" for k in range(h, 2)) + f"""    s_waitcnt vmcnt(0) lgkmcnt(0)
    s_nop 15
    v_mov_b32 v{vINI}, {OOB}
    s_barrier
    s_branch L_restart
"""
    def wrot(self):
        self.S(f"s_lshl_b32 s{sC}, s{sHG}, 6", R('s', sHG), R('s', sC))
        for r in list(range(aVk, aVk + 8)) + list(range(aV, aV + 8)):
            self.V(f"v_xor_b32 v{r}, s{sC}, v{r}", R('v', r) + R('s', sC), R('v', r))
    def final(self):
        p = self.p
        self.marks.append(("F", p.nm()))
        fl = self.flag(2, self.pst, lag=0); fl.est = p.nm() - 1
        p.LAT_G = 0
        c = self.poll('pp', vFP, SWS, None, 8, 1, p.nm() - 1, after=[fl])
        ld = []
        for e in range(3):
            for q in range(2):
                if e == 2 and q == 0: self.S(f"s_add_u32 s{sMR}, s{sMR}, 4096", R('s', sMR), R('s', sMR))
                ld.append(self.G(('a', FB + (e * 2 + q) * 4), 4, vL16, SWS, sMR, ((e * 2 + q) & 3) * 1024, 'sc1'))
        for e in range(3):
            ld.append(self.G(('a', FB + (6 + e) * 4), 4, vL16, SWS, sM8r, (e + 1) * 1024, 'sc1'))
        for g in ld: p.dep(c, g, 0); g.soft = -1000
        f = p.fence("; partial sums requested")
        for e in range(3):
            for q in range(3):
                r = ACC1 + (q * 8 + 6) * 4 if q < 2 else ACC1 + 64
                bop = ('a', FB + ((e * 2 + q) if q < 2 else 6 + e) * 4)
                self.M(r, ('a', SELX), bop, r); self.M(r + 4, ('a', SELY), bop, r + 4)
        for q in range(3):
            r = ACC1 + (q * 8 + 6) * 4 if q < 2 else ACC1 + 64
            self.pack(r, r, None, True)
            if q == 1: self.S(f"s_add_u32 s{sOut}, s{sOut}, 16384", R('s', sOut), R('s', sOut))
            self.ST(r, 4, vOUT, SOUT, sOut if q < 2 else sO8ut, 0, self.opt.get('outflags', ''))
    def make_dma(self):
        p = self.p
        readers = {}
        for o in p.ops:
            for pc, c in o.lds_rd: readers.setdefault((pc, c), []).append(o)
        def firstm(o):
            return min(s.idx for s, _ in o.succs if s.kind == 'M' and o in s.needs)
        prev = {}
        for n, x in enumerate(self.pieces):
            x['n'] = n
            x['rd'] = list(dict.fromkeys(o for c in x['cells'] for o in readers[(c, x['content'])]))
            if x['key'] is None: x['key'] = (x['bar'].pin, 1, min(firstm(o) for o in x['rd']))
        for x in sorted(self.pieces, key=lambda x: (x['key'], x['n'])):
            old = list(dict.fromkeys(o for c in x['cells'] if c in prev for o in readers[(c, prev[c])]))
            x['old'] = old; x['fb'] = None; av = -1
            if old:
                if old[0].private: av = max(o.est for o in old) + 8 + p.LAT_DS
                else:
                    x['fb'] = max((b for b in self.bars if b.drain & set(old)), key=lambda b: b.seq); av = x['fb'].pin
            for g in x['gate'] or (): av = max(av, g.soft + (0 if g.kind == 'C' else 40))
            x['av'] = av
            for c in x['cells']: prev[c] = x['content']
        sp = self.opt.get('dspace', 4)
        rem = sorted(self.pieces, key=lambda x: (x['key'], x['n'])); t = -1; order = []
        while rem:
            x = next((y for y in rem if not (y['gate'] and y['av'] > t)), None)
            gx = [y for y in rem if y['gate'] and (x is None or y['av'] <= max(t, x['av']))]
            if gx and (x is None or gx[0]['key'] < x['key']): x = gx[0]
            t = max(t, x['av']) + (sp if x['av'] > -1 else 0)
            order.append(x); rem.remove(x)
        prevL = None; cur = None
        p.fence_op = None
        for x in order:
            srd, vr, sb, lit, fl = x['src']
            imm = x['ldsoff'] - cur[1] if cur and cur[0] == x['ldsreg'] else -1
            if not (0 <= imm < 4096) or lit - imm < 0:
                self.S(f"s_add_u32 m0, s{x['ldsreg']}, {x['ldsoff']}", R('s', x['ldsreg']), [('m0', 0)], nofence=True)
                cur = (x['ldsreg'], x['ldsoff'], cur[2] if cur else None); imm = 0
            if cur[2] != (sb, lit - imm):
                self.S(f"s_add_u32 s{sD}, s{sb}, {lit - imm}", [], R('s', sD), nofence=True)
                cur = (cur[0], cur[1], (sb, lit - imm))
            L = Op('L', f"buffer_load_dwordx4 v{vr}, {rs('s', srd, 4)}, s{sD} offen offset:{imm} {fl} lds", rd=[('m0', 0)] + R('s', sD),
                   lds_wr=[(c, x['content']) for c in x['cells']], nofence=True)
            if order.index(x) >= self.opt.get('burst', 32): L.est = 0
            p.add(L); L.rd += R('v', vr)
            if prevL is not None: p.dep(prevL, L, sp)
            prevL = L
            if x['fb'] is not None: p.dep(x['fb'], L, 0)
            elif x['old']:
                for o in x['old']: L.needs.append(o); p.dep(o, L, p.LAT_DS)
            for g in x['gate'] or ():
                p.dep(g, L, 0 if g.kind == 'C' else 30)
                if g.kind == 'ST': L.needs.append(g)
            L.soft = x['key'][0] - 200
            if x['bar'] is not None:
                x['bar'].needs.append(L); p.dep(L, x['bar'], 0)
            else:
                for o in x['rd']: o.needs.append(L); p.dep(L, o, 0)
    def finish(self):
        assert not self.pend
        self.make_dma()
        lin = self.p.schedule()
        lin = insert_waits(lin)
        lin, nops = fix_hazards(lin)
        verify_lds(lin)
        t, res = stats(lin)
        mk = self.marks + [("end", len(res))]
        rep = [f"{n0}:{sum(res[i0:i1])}/{16*(i1-i0)}" for (n0, i0), (n1, i1) in zip(mk, mk[1:])]
        print(f"; instrs {len(lin)} mfma {len(self.p.mf)} nops {nops} est cycles {t}  " + " ".join(rep), file=sys.stderr)
        return lin

def maxpass(h):
    F, A0, MX, AD = ACC1, ACC1 + 4, ACC1 + 16, ACC1 + 20
    s = f"""L_max{h}:
    s_nop 15
    v_lshrrev_b32 v{AD+4}, 4, v{vL16}
    v_and_b32 v{AD+5}, 15, v{AD+4}
    v_lshlrev_b32 v{AD+5}, 8, v{AD+5}
    v_and_b32 v{AD+6}, 16, v{AD+4}
    v_lshl_add_u32 v{AD+5}, v{AD+6}, 1, v{AD+5}
    v_lshrrev_b32 v{AD+6}, 5, v{AD+4}
    v_lshl_add_u32 v{AD+5}, v{AD+6}, 4, v{AD+5}
"""
    for k in range(4):
        s += f"    s_lshr_b32 s{sCnt}, s{sXw+k}, 4\n    v_add_u32 v{AD+k}, s{sCnt}, v{AD+5}\n"
    for q in range(3): s += f"    v_mov_b32 v{MX+q}, 0xff800000\n"
    s += f"    s_add_u32 s3, s{sKV}, {h * 131072}\n    s_mov_b32 s{sCnt}, 0\nL_maxl{h}:\n"
    for k in range(4):
        s += f"    buffer_load_dwordx4 {rs('v', F, 4)}, v{AD+k}, {rs('s', SK, 4)}, s3 offen\n    s_waitcnt vmcnt(0)\n"
        for q in range(3):
            bop = rs('v', QF + (q * 4 + k) * 4, 4) if q < 2 else rs('a', QF8 + 4 * k, 4)
            d = rs('v', A0 + 4 * q, 4)
            s += f"    v_mfma_f32_16x16x32_bf16 {d}, {rs('v', F, 4)}, {bop}, {'0' if k == 0 else d}\n"
        s += "    s_nop 15\n"
    for q in range(3):
        a = A0 + 4 * q
        s += f"    v_max3_f32 v{MX+q}, v{MX+q}, v{a}, v{a+1}\n    v_max3_f32 v{MX+q}, v{MX+q}, v{a+2}, v{a+3}\n"
    s += f"""    s_add_u32 s3, s3, 4096
    s_add_u32 s{sCnt}, s{sCnt}, 1
    s_cmp_lt_u32 s{sCnt}, 32
    s_cbranch_scc1 L_maxl{h}
"""
    for q in range(3):
        for op in ("v_permlane16_swap_b32", "v_permlane32_swap_b32"):
            s += f"    v_mov_b32 v{F}, v{MX+q}\n    s_nop 1\n    {op} v{F}, v{MX+q}\n    s_nop 1\n    v_max_f32 v{MX+q}, v{F}, v{MX+q}\n"
        for i in range(4): s += f"    v_xor_b32 v{NEGM+4*q+i}, 0x80000000, v{MX+q}\n"
    s += f"    s_nop 7\n    s_branch L_maxret{h}\n"
    return s

def srd(reg, ptr, size):
    return f"    s_mov_b32 s{reg}, s{ptr}\n    s_mov_b32 s{reg+1}, s{ptr+1}\n    s_mov_b32 s{reg+2}, {size}\n    s_mov_b32 s{reg+3}, 0x20000\n"

def prologue(opt):
    s = f""".globl {KNAME}
.p2align 8
.type {KNAME},@function
{KNAME}:
    s_cmp_ge_u32 s2, 256
    s_cbranch_scc1 L_exit
;STAMP
    s_load_dwordx8 s[{SX}:{SX+7}], s[0:1], 0
    s_load_dwordx8 s[{SWO}:{SWO+7}], s[0:1], 32
    v_lshrrev_b32 v1, 6, v0
    v_cmp_eq_u32 vcc, 0, v0
    v_readfirstlane_b32 s{sW}, v1
    s_and_b32 s3, s2, 7
    s_lshr_b32 s4, s2, 3
    s_and_b32 s5, s3, 1
    s_lshl_b32 s5, s5, 3
    s_and_b32 s6, s4, 7
    s_add_u32 s{sB}, s5, s6
    s_lshr_b32 s{sHG}, s3, 1
    s_lshr_b32 s{sJ}, s4, 3
    s_lshl_b32 s5, s{sHG}, 3
    s_lshl_b32 s6, s{sJ}, 1
    s_add_u32 s{sH0}, s5, s6
    s_lshl_b32 s{sLw}, s{sW}, 12
    s_lshl_b32 s5, s{sB}, 5
    s_add_u32 s7, s5, s{sH0}
    s_lshl_b32 s{sKV}, s7, 17
;KVSAME
    s_lshl_b32 s3, s{sB}, 4
    v_mov_b32 v{vIR}, s3
    v_mov_b32 v2, {OOB}
    v_cndmask_b32 v{vINI}, v2, v{vIR}, vcc
    s_mov_b32 s{sThr}, {L_HI - L_LO:#x}
    s_mov_b32 s{sThr+1}, {L_HI - L_LO:#x}
    s_mov_b32 s{sLo}, {L_LO:#x}
    s_xor_b32 s7, s{sB}, s{sJ}
    s_and_b32 s7, s7, {opt.get('rot', 1)}
    s_mul_i32 s5, s{sB}, 147456
    s_lshl_b32 s6, s{sH0}, 8
"""
    for n in range(4):
        s += f"""    s_xor_b32 s3, s7, {n}
    s_lshl_b32 s4, s3, 8
    s_add_u32 s{sXn+n}, s5, s4
    s_lshl_b32 s4, s3, 20
    s_add_u32 s{sWQn+n}, s6, s4
"""
    s += f"""    s_xor_b32 s3, s7, s{sW}
    s_lshl_b32 s3, s3, 8
    s_lshl_b32 s4, s{sW}, 15
    s_sub_u32 s3, s3, s4
    s_add_u32 s3, s3, 131072
    s_add_u32 s{sX8}, s5, s3
    ; own flag line
    s_lshl_b32 s3, s{sB}, 2
    s_add_u32 s3, s3, s{sJ}
    s_lshl_b32 s3, s3, 2
    s_add_u32 s3, s3, s{sHG}
    s_lshl_b32 s3, s3, 2
    s_add_u32 s3, s3, s{sW}
    s_lshl_b32 s3, s3, 7
    s_add_u32 s{sFl}, s3, {WS_FL}
    v_mov_b32 v4, 0
    v_mov_b32 v5, 0
    v_mov_b32 v6, 0
    v_mov_b32 v7, 0
    v_and_b32 v1, 63, v0
    v_cmp_eq_u32 vcc, 0, v1
    s_nop 0
    s_waitcnt lgkmcnt(0)
    v_cndmask_b32 v{vFW}, v2, v4, vcc
""" + srd(SDBG, SWO + 4, 256) + srd(SOUT, SWO + 2, 2359296) + srd(SWS, SWO + 6, WS_SIZE) + f"""    s_mov_b32 s{SWO+2}, 4194304
    s_mov_b32 s{SWO+3}, 0x20000
""" + srd(SWQ, SX + 6, 4194304) + srd(SV, SX + 4, 67108864) + srd(SK, SX + 2, 67108864) + f"""    s_mov_b32 s{SX+2}, 2359296
    s_mov_b32 s{SX+3}, 0x20000
    buffer_store_dwordx4 v[4:7], v{vFW}, {rs('s', SWS, 4)}, s{sFl} offen sc1
L_restart:
    v_mbcnt_lo_u32_b32 v0, -1, 0
    v_mbcnt_hi_u32_b32 v0, -1, v0
    ; lane decomposition: v1 = r = l&15, v2 = g = l>>4
    v_and_b32 v1, 15, v0
    v_lshrrev_b32 v2, 4, v0
    v_lshlrev_b32 v{vL16}, 4, v0
    s_lshl_b32 s3, s{sW}, 15
"""
    for j in range(4):
        s += f"""    v_add_u32 v3, {4*j}, v2
    v_xor_b32 v{TMP}, v1, v3
    v_lshlrev_b32 v{TMP}, 4, v{TMP}
    v_lshl_add_u32 v{TMP}, v3, 10, v{TMP}
    v_add_u32 v{TMP}, s3, v{TMP}
    v_subrev_u32 v{vX+j}, {1024*j}, v{TMP}
"""
    s += f"""    s_lshl_b32 s3, s{sW}, 2
    v_add_u32 v3, s3, v2                      ; 4w+i
    v_xor_b32 v{TMP}, v1, v3
    v_lshlrev_b32 v{TMP}, 4, v{TMP}
    v_lshl_add_u32 v{TMP+1}, v2, 8, s{sLw}      ; w*4096 + i*256
    v_add_u32 v{vK}, v{TMP}, v{TMP+1}
    v_and_b32 v{TMP}, 7, v3
    v_lshlrev_b32 v{TMP}, 1, v{TMP}
    v_xor_b32 v{TMP}, v1, v{TMP}
    v_lshlrev_b32 v{TMP}, 4, v{TMP}
    v_add_u32 v{vV}, v{TMP}, v{TMP+1}
    v_lshl_add_u32 v{vWO}, v3, 10, v{TMP}
    s_lshl_b32 s3, s{sW}, 4
    v_add_u32 v3, s3, v2
    v_lshl_add_u32 v{vWQ}, v3, 13, v{TMP}
"""
    return s

def prologue2(opt):
    s = ""
    if opt.get('cpf', 1):
        s += f"""    ; pull this kernel's code into L2: 4 lines per wave
    s_getpc_b64 s[4:5]
L_pc:
    s_lshr_b32 s3, s2, 3
    s_lshl_b32 s3, s3, 2
    s_add_u32 s3, s3, s{sW}
    s_lshl_b32 s3, s3, 9
    v_and_b32 v3, 3, v0
    v_lshl_add_u32 v3, v3, 7, s3
    v_min_u32 v3, L_exit-L_pc, v3
    v_mov_b32 v{TMP+1}, s5
    v_add_co_u32 v{TMP}, vcc, s4, v3
    s_nop 1
    v_addc_co_u32 v{TMP+1}, vcc, 0, v{TMP+1}, vcc
    global_load_dword v{vDUM}, v[{TMP}:{TMP+1}], off
"""
    s += f"    s_mov_b32 s{sC}, {CSCALE:#x}\n"
    for i in range(4):
        s += f"    s_xor_b32 s3, s{sW}, {i}\n    s_lshl_b32 s{sXw+i}, s3, 10\n"
    s += f"""    ; attention output (own stores / cluster loads), output-projection weights
    s_lshl_b32 s3, s{sB}, 2
    s_add_u32 s3, s3, s{sHG}
    s_mul_i32 s3, s3, {8 * 36864}
    s_lshl_b32 s4, s{sW}, 13
    s_add_u32 s3, s3, s4
    s_lshl_b32 s5, s{sHG}, 20
    s_lshl_b32 s6, s{sJ}, 8
    s_add_u32 s5, s5, s6
"""
    for n in range(4):
        s += f"""    s_xor_b32 s6, s{sJ}, {n}
    s_mul_i32 s7, s6, 73728
    s_add_u32 s{sOn+n}, s3, s7
    s_lshl_b32 s7, s6, 18
    s_add_u32 s{sWOn+n}, s5, s7
"""
    for i in range(4):
        s += f"    s_add_u32 s{sOs+i}, s{sOn}, s{sXw+i}\n"
    s += f"""    s_sub_u32 s4, 32768, s4
    s_add_u32 s4, s4, s{sXw+3}
    v_add_u32 v{vL8}, s4, v{vL16}
    s_and_b32 s6, s{sB}, 7
    s_lshl_b32 s6, s6, 2
    s_add_u32 s6, s6, s{sW}
    s_lshl_b32 s7, s6, 15
    s_add_u32 s{sPFo}, s5, s7
    s_and_b32 s6, s6, 30
    s_lshl_b32 s7, s6, 17
    s_lshl_b32 s6, s{sH0}, 8
    s_add_u32 s7, s7, s6
    s_add_u32 s{sPFq}, s7, 256
    s_lshl_b32 s3, s{sB}, 2
    s_add_u32 s3, s3, s{sJ}
    s_lshl_b32 s3, s3, 2
"""
    for e in range(4):
        s += f"""    s_xor_b32 s4, s{sHG}, {e ^ 3}
    s_add_u32 s4, s4, s3
    s_lshl_b32 s4, s4, 2
    s_add_u32 s4, s4, s{sW}
    s_mul_i32 s4, s4, 6144
    s_add_u32 s{sMB+e}, s4, {WS_MB + (e % 3) * 2048}
"""
    s += f"""    s_xor_b32 s4, s{sHG}, s{sW}
    s_add_u32 s4, s4, s3
    s_lshl_b32 s4, s4, 12
    s_add_u32 s4, s4, {WS_M8}
    s_lshl_b32 s5, s{sW}, 10
    s_add_u32 s{sM8s}, s4, s5
    s_cmp_eq_u32 s{sW}, 0
    s_cselect_b32 s{sM8r}, s4, {OOB}
    s_mul_i32 s4, s{sB}, 147456
    s_lshl_b32 s5, s{sJ}, 8
    s_add_u32 s4, s4, s5
    s_xor_b32 s5, s{sHG}, s{sW}
    s_xor_b32 s6, s5, 3
    s_lshl_b32 s6, s6, 6
    s_lshl_b32 s7, s{sW}, 15
    s_add_u32 s6, s6, s7
    s_add_u32 s{sOut}, s4, s6
    s_lshl_b32 s5, s5, 6
    s_add_u32 s4, s4, s5
    s_add_u32 s4, s4, 131072
    s_cmp_eq_u32 s{sW}, 0
    s_cselect_b32 s{sO8ut}, s4, {OOB}
    v_lshlrev_b32 v3, 1, v2
"""
    for k in range(4):
        hs, u = k >> 1, k & 1
        s += f"""    v_add_u32 v{TMP}, {8*hs+u}, v3
    v_xor_b32 v{TMP}, v{TMP}, v1
    v_lshlrev_b32 v{TMP}, 4, v{TMP}
    v_lshl_add_u32 v{TMP}, v1, 8, v{TMP}
    v_add_u32 v{aX8+k}, {X8R}, v{TMP}
    v_add_u32 v{aXo+k}, s{sLw}, v{TMP}
    v_add_u32 v{aXo+4+k}, {VR}, v{aXo+k}
"""
    s += f"""    ; K read addresses
    v_and_b32 v{TMP}, 1, v2
    v_lshlrev_b32 v{TMP}, 1, v{TMP}
    v_lshrrev_b32 v{TMP+1}, 1, v2
    v_or_b32 v{TMP}, v{TMP}, v{TMP+1}           ; pi(g)
    v_lshlrev_b32 v{vOUT}, 10, v1
    v_lshl_add_u32 v{vOUT}, v{TMP}, 4, v{vOUT}
    v_lshrrev_b32 v{TMP+1}, 2, v1               ; r>>2
    v_and_b32 v{TMP+2}, 3, v1                   ; r&3
    v_lshlrev_b32 v{TMP+3}, 12, v{TMP+1}
    v_lshl_add_u32 v{TMP+3}, v{TMP+2}, 8, v{TMP+3}
"""
    for k in range(4):
        s += f"""    s_lshr_b32 s3, s{sXw+k}, 8
    v_add_u32 v3, s3, v{TMP}
    v_xor_b32 v3, v3, v1
    v_lshl_add_u32 v{aK+k}, v3, 4, v{TMP+3}
    v_add_u32 v{aK8+k}, s{sXw}, v{aK+k}
"""
    s += f"""    ; constant A operands: row-sum selector, partial-sum selectors
    v_mov_b32 v{NEGM}, 0
    v_cmp_eq_u32 vcc, 0, v{TMP+2}
    v_mov_b32 v3, 0x3f803f80
    v_and_b32 v{TMP}, 1, v1
    v_cndmask_b32 v3, v{NEGM}, v3, vcc
    v_cmp_eq_u32 vcc, v2, v{TMP+1}
    v_lshlrev_b32 v{TMP}, 4, v{TMP}
    v_mov_b32 v{TMP+3}, 0x3f80
"""
    for k in range(4): s += f"    v_accvgpr_write_b32 a{ONES+k}, v3\n"
    s += f"""    v_lshlrev_b32 v{TMP}, v{TMP}, v{TMP+3}
    v_cndmask_b32 v{TMP}, v{NEGM}, v{TMP}, vcc
    v_cmp_gt_u32 vcc, 2, v{TMP+2}
    v_accvgpr_write_b32 a{SELX+2}, 0
    v_accvgpr_write_b32 a{SELX+3}, 0
    v_accvgpr_write_b32 a{SELY}, 0
    v_accvgpr_write_b32 a{SELY+1}, 0
    v_cndmask_b32 v3, v{NEGM}, v{TMP}, vcc
    v_cndmask_b32 v{TMP}, v{TMP}, v{NEGM}, vcc
    v_accvgpr_write_b32 a{SELX}, v3
    v_accvgpr_write_b32 a{SELY+2}, v3
    v_accvgpr_write_b32 a{SELX+1}, v{TMP}
    v_accvgpr_write_b32 a{SELY+3}, v{TMP}
    v_and_b32 v{TMP}, 1, v2
    v_lshl_add_u32 v{TMP}, v{TMP}, 2, v{TMP+1}
    v_lshlrev_b32 v{TMP}, 1, v{TMP}             ; f
    v_lshlrev_b32 v{TMP+3}, 12, v2
    v_lshl_add_u32 v{TMP+3}, v{TMP+1}, 8, v{TMP+3}
    v_and_b32 v3, 1, v1
    v_lshl_add_u32 v{TMP+3}, v3, 3, v{TMP+3}
    v_lshrrev_b32 v{TMP+2}, 1, v{TMP+2}         ; c>>1
    s_lshl_b32 s4, s{sW}, 2
"""
    for t in range(8):
        s += f"""    s_xor_b32 s3, s4, {2*t}
    v_add_u32 v3, s3, v{TMP+2}
    v_xor_b32 v3, v3, v{TMP}
    v_lshl_add_u32 v{aVk+t}, v3, 4, v{TMP+3}
    v_add_u32 v{aV+t}, {VR}, v{aVk+t}
"""
    s += f"""    v_add_u32 v{aL16}, {X8R}, v{vL16}
    s_lshr_b32 s3, s{sW}, 1
    s_lshl_b32 s3, s3, 10
    s_and_b32 s4, s{sW}, 1
    s_lshl_b32 s4, s4, 3
    s_add_u32 s3, s3, s4
    s_add_u32 s3, s3, {P8R}
    v_add_u32 v{aP8w}, s3, v{vL16}
"""
    for k in range(4):
        s += f"    v_add_u32 v{TMP+4+k}, s{sXw+k}, v{aL16}\n"
    for k in range(1, 12): s += f"    v_mov_b32 v{NEGM+k}, 0\n"
    s += f"""    ; flag lines to poll: cluster members (same wave), reduction group
    v_and_b32 v{TMP}, 3, v0
    s_and_b32 s3, s{sFl}, {0xffffffff ^ (3 << 11):#x}
    v_lshl_add_u32 v{vFO}, v{TMP}, 11, s3
    s_and_b32 s3, s{sFl}, {0xffffffff ^ (3 << 9):#x}
    v_lshl_add_u32 v{TMP+1}, v{TMP}, 9, s3
    v_mul_u32_u24 v{TMP+2}, 640, v{TMP}
    v_xor_b32 v{TMP+2}, s{sFl}, v{TMP+2}
    s_cmp_eq_u32 s{sW}, 0
    s_cselect_b32 s3, 4, 0
    v_and_b32 v{TMP}, s3, v0
    v_cmp_ne_u32 vcc, 0, v{TMP}
    s_lshl_b32 s3, s{sW}, 2
    s_add_u32 s3, s3, {CKR}
    v_cndmask_b32 v{vFP}, v{TMP+1}, v{TMP+2}, vcc
    v_add_u32 v{aCK}, s3, v{vL16}
    v_lshrrev_b32 v{vPF}, 1, v0
    v_lshlrev_b32 v{vPF}, 13, v{vPF}
    v_and_b32 v{TMP}, 1, v0
    v_lshl_add_u32 v{vPF}, v{TMP}, 7, v{vPF}
    v_mov_b32 v{ONEV}, 1
"""
    return s

def emit(g, lin, opt):
    st = opt.get('stamps')
    n = [0]
    def stamp():
        k = n[0]; n[0] += 1
        a = 88 + 4 * (k & 1); b = 88 + 4 * ((k + 1) & 1)
        t = f"    s_memrealtime s[{a}:{a+1}]\n    s_memtime s[{a+2}:{a+3}]\n"
        if k > 0: t += f"    v_writelane_b32 v{STA}, s{b}, {k-1}\n    v_writelane_b32 v{STB}, s{b+2}, {k-1}\n"
        return t
    s = prologue(opt)
    if opt.get('kvsame'): s = s.replace(";KVSAME", f"    s_mov_b32 s{sKV}, 0")
    if st: s = s.replace(";STAMP\n", stamp())
    W = "    s_waitcnt lgkmcnt(0)\n"
    if st == 2:
        s = s.replace("L_restart:\n", "L_restart:\n" + stamp())
        s += W + stamp()
    done2 = False; nl = 0
    for o in lin:
        if not done2 and (o.kind not in ('L', 'S', 'G', 'N') or nl >= opt.get('p2at', 10)):
            if st == 2: s += W + stamp()
            s += prologue2(opt); done2 = True
            if st == 2: s += W + stamp()
        if st == 2 and o.kind == 'W' and n[0] == 5: s += W + stamp()
        nl += o.kind == 'L'
        s += (o.text if o.kind == 'X' else "    " + o.text) + "\n"
        if st and (o.kind == 'B' or 'L_ret_o1' in o.text): s += stamp()
        if st and ('offset:8 sc1' in o.text and o.kind == 'ST' or 'L_ret_pp' in o.text): s += "    s_waitcnt lgkmcnt(0)\n" + stamp()
    if st:
        s += "    s_waitcnt lgkmcnt(0)\n" + stamp() + "    s_waitcnt vmcnt(0) lgkmcnt(0)\n" + stamp() + "    s_waitcnt lgkmcnt(0)\n" + stamp()
        s += f"""    s_lshl_b32 s3, s2, 2
    s_add_u32 s3, s3, s{sW}
    s_lshl_b32 s3, s3, 9
    s_add_u32 s3, s3, 0x3000000
    s_mov_b32 s{SWS+2}, 0x4000000
    v_lshrrev_b32 v1, 2, v{vL16}
    buffer_store_dword v{STA}, v1, s[{SWS}:{SWS+3}], s3 offen
    buffer_store_dword v{STB}, v1, s[{SWS}:{SWS+3}], s3 offen offset:256
"""
        print("; stamps", n[0] - 1, file=sys.stderr)
        if opt.get('dbgwg') is not None:
            s += f"""    s_cmp_lg_u32 s2, {opt['dbgwg']}
    s_cbranch_scc1 L_exit
    s_cmp_lg_u32 s{sW}, 0
    s_cbranch_scc1 L_exit
    v_readlane_b32 s3, v{STA}, 0
    v_lshrrev_b32 v1, 1, v1
    v_subrev_u32 v1, {2 * opt.get('dbgoff', 0)}, v1
    s_mov_b32 s{SDBG+2}, 64
    s_nop 3
    v_subrev_u32 v{STA}, s3, v{STA}
    s_sleep 127
    s_sleep 127
    s_sleep 127
    buffer_store_short v{STA}, v1, s[{SDBG}:{SDBG+3}], 0 offen
"""
    s += "    s_endpgm\n" + g.tail + "L_exit:\n    s_endpgm\n"
    return s

def build(opt):
    g = Gen(opt)
    g.proj('Q0'); g.attn(0); o0 = g.ost
    g.proj('Q1'); g.attn(1); o1 = g.ost
    g.wrot()
    g.proj('W0', gate=[g.gate0], own=[g.gate0])
    g.proj('W1', first=False, gate=[g.gate1], own=o1)
    g.final()
    body = emit(g, g.finish(), opt)
    nv = 512
    s = "; fused MHA block: Q projection, attention, output projection and reduction in one launch\n"
    s += "; @launch grid=(256,1,1) block=(256,1,1) lds=163840\n"
    s += '.amdgcn_target "amdgcn-amd-amdhsa--gfx950"\n.text\n' + body
    s += f""".section .rodata,"a"
.p2align 6
.amdhsa_kernel {KNAME}
  .amdhsa_next_free_vgpr 512
  .amdhsa_next_free_sgpr 102
  .amdhsa_accum_offset 256
  .amdhsa_group_segment_fixed_size 0
  .amdhsa_kernarg_size 64
  .amdhsa_user_sgpr_count 2
  .amdhsa_user_sgpr_kernarg_segment_ptr 1
  .amdhsa_system_sgpr_workgroup_id_x 1
.end_amdhsa_kernel
"""
    return s

if __name__ == "__main__":
    opt = {}
    out = sys.argv[1]
    for a in sys.argv[2:]:
        k, v = a.split("=")
        opt[k] = int(v) if v.lstrip('-').isdigit() else v.replace('+', ' ')
    open(out, "w").write(build(opt))
```
